```python
import torch

def _softmax(x, axis=-1):
    return torch.softmax(x, dim=axis)
def _gelu(x):
    return torch.nn.functional.gelu(x, approximate="tanh")
def _silu(x):
    return torch.nn.functional.silu(x)
def _sigmoid(x):
    return torch.sigmoid(x)
def _layernorm(x, axis=-1, eps=1e-5):
    m = x.mean(dim=axis, keepdim=True)
    v = x.var(dim=axis, keepdim=True, unbiased=False)
    return (x - m) / torch.sqrt(v + eps)
def _scatter_add(tgt, idx, src, axis=0):
    return tgt.clone().index_add_(axis, idx, src)
def _segment_sum(src, seg, n):
    out = torch.zeros((n,) + src.shape[1:], dtype=src.dtype)
    return out.index_add_(0, seg, src)
def _pad(x, pw):
    flat = tuple(v for pair in reversed(pw) for v in pair)
    return torch.nn.functional.pad(x, flat)

kernel_name = 'interleave_layers__ssm_conv_h3__sliding_block__prompt'

def setup_inputs():

    _w = (lambda a: (lambda t: t.to(torch.bfloat16) if t.is_floating_point() else t)(torch.as_tensor(a)))
    def _A_setup():
        B, S, D = 1, 2048, 448
        ks = 4
        return {
            "q": _w((lambda *s: torch.randn(*s, dtype=torch.bfloat16) * 0.05)(B, S, D)),
            "k": _w((lambda *s: torch.randn(*s, dtype=torch.bfloat16) * 0.4)(B, S, D)),
            "v": _w((lambda *s: torch.randn(*s, dtype=torch.bfloat16) * 0.4)(B, S, D)),
            "shift_k": _w((lambda *s: torch.randn(*s, dtype=torch.bfloat16) * 0.4)(D, ks) * 0.5),
            "ssm_k": _w((lambda *s: torch.randn(*s, dtype=torch.bfloat16) * 0.4)(D, S) * (1.0 / S ** 0.5)),
            "ssm_D": _w((lambda *s: torch.randn(*s, dtype=torch.bfloat16) * 0.4)(D)),
        }
    _A_in = _A_setup()

    def _B_setup():
        B, S, D = 1, 2048, 448
        return {
            "x": _w((lambda *s: torch.randn(*s, dtype=torch.bfloat16) * 0.05)(B, S, D)),
            "wqkv": _w((lambda *s: torch.randn(*s, dtype=torch.bfloat16) * 0.05)(D, 3 * D)),
            "wo": _w((lambda *s: torch.randn(*s, dtype=torch.bfloat16) * 0.05)(D, D)),
        }
    _B_in = _B_setup()

    return {
        "A_q": _A_in["q"],
        "A_k": _A_in["k"],
        "A_v": _A_in["v"],
        "A_shift_k": _A_in["shift_k"],
        "A_ssm_k": _A_in["ssm_k"],
        "A_ssm_D": _A_in["ssm_D"],
        "B_x": _B_in["x"],
        "B_wqkv": _B_in["wqkv"],
        "B_wo": _B_in["wo"],
    }

def reference(A_q, A_k, A_v, A_shift_k, A_ssm_k, A_ssm_D, B_x, B_wqkv, B_wo):
    def _A_ref(q, k, v, shift_k, ssm_k, ssm_D):
        B, S, D = q.shape
        ks = shift_k.shape[-1]
        k_pad = _pad(k, ((0, 0), (ks - 1, 0), (0, 0)))
        k_shift = torch.zeros_like(k)
        for t in range(ks):
            k_shift = k_shift + k_pad[:, t:t + S, :] * shift_k[:, ks - 1 - t][None, None, :]
        kv = k_shift * v
        L = 2 * S
        kv_pad = _pad(kv, ((0, 0), (0, S), (0, 0)))
        kf_pad = _pad(ssm_k, ((0, 0), (0, S)))
        kv_f = (lambda x, axes=(-2,-1): torch.fft.rfft2(x.float(), dim=axes))(kv_pad[:, None, :, :], axes=(1, 2))
        kf_f = (lambda x, axes=(-2,-1): torch.fft.rfft2(x.float(), dim=axes))(kf_pad[:, None, :], axes=(1, 2))
        kf_f = (lambda x, *d: x.permute(*d))(kf_f, 1, 2, 0)
        y_f = kv_f * kf_f[None, :, :, :]
        y = (lambda x, s, axes=(-2,-1): torch.fft.irfft2(x, s=s, dim=axes).to(torch.bfloat16))(y_f, (1, L), axes=(1, 2))[:, 0, :S, :]
        y = y + kv * ssm_D[None, None, :]
        return q * y

    def _B_ref(x, wqkv, wo):
        B, S, D = x.shape
        H = 16; Dh = D // H; W = 256
        qkv = (lambda x, *d: x.permute(*d))((x @ wqkv).reshape(B, S, 3, H, Dh), 2, 0, 3, 1, 4)
        q, k, v = qkv[0], qkv[1], qkv[2]
        scores = torch.einsum("bhqd,bhkd->bhqk", q, k) * (Dh ** -0.5)
        idx = torch.arange(S)
        mask = (idx[:, None] - idx[None, :] >= 0) & (idx[:, None] - idx[None, :] < W)
        scores = torch.where(mask[None, None], scores, -1e9)
        p = _softmax(scores, axis=-1)
        o = torch.einsum("bhqk,bhkd->bhqd", p, v)
        return (lambda x, *d: x.permute(*d))(o, 0, 2, 1, 3).reshape(B, S, D) @ wo

    x = A_q
    x = x + _A_ref(_layernorm(x, axis=-1), A_k, A_v, A_shift_k, A_ssm_k, A_ssm_D)
    x = x + _B_ref(_layernorm(x, axis=-1), B_wqkv, B_wo)
    x = x + _A_ref(_layernorm(x, axis=-1), A_k, A_v, A_shift_k, A_ssm_k, A_ssm_D)
    x = x + _B_ref(_layernorm(x, axis=-1), B_wqkv, B_wo)
    return x
```

```python
import re

REG_RE = re.compile(r"^(-|\|)?(abs\()?([vas])(?:(\d+)|\[(\d+):(\d+)\])\)?\|?$")
TRANS = ("v_exp_f32", "v_log_f32", "v_rcp_f32", "v_rsq_f32", "v_sqrt_f32", "v_sin_f32", "v_cos_f32")


def regs_of(tok):
    tok = tok.strip()
    if tok in ("vcc",):
        return [("s", 106), ("s", 107)]
    if tok == "vcc_lo":
        return [("s", 106)]
    if tok == "vcc_hi":
        return [("s", 107)]
    if tok == "exec":
        return [("s", 126), ("s", 127)]
    if tok == "m0":
        return [("s", 124)]
    m = REG_RE.match(tok)
    if not m:
        return []
    f = m.group(3)
    if m.group(4) is not None:
        return [(f, int(m.group(4)))]
    return [(f, i) for i in range(int(m.group(5)), int(m.group(6)) + 1)]


def split_ops(s):
    ops, depth, cur = [], 0, ""
    for ch in s + ",":
        if ch in "[(":
            depth += 1
        elif ch in "])":
            depth -= 1
        if ch == "," and depth == 0:
            ops.append(cur.strip())
            cur = ""
        else:
            cur += ch
    return [o for o in ops if o]


class Asm:
    def __init__(self):
        self.lines = []
        self.slot = 0
        self.last = {}
        self.maxv = -1
        self.maxa = -1
        self.maxs = -1

    def raw(self, s):
        self.lines.append(s)

    def comment(self, s):
        self.lines.append("    ; " + s)

    def label(self, name):
        self.flush()
        self.lines.append(name + ":")

    def flush(self, n=None):
        need = 0
        for r, d in self.last.items():
            for kind, sl in d.items():
                if kind == "mfma_d":
                    continue
                w = {"mfma4": 8, "mfma8": 12, "valu": 2, "trans": 2, "valu_s": 5, "dot": 3, "m0": 1,
                     "mfmaC4": 3, "mfmaC8": 7, "stdata": 2}.get(kind, 0)
                need = max(need, w - (self.slot - sl - 1))
        self.nop(need)
        self.last = {}

    def nop(self, n):
        while n > 0:
            k = min(n, 16)
            self.lines.append("    s_nop %d" % (k - 1))
            self.slot += k
            n -= k

    def _dist(self, r, kind):
        d = self.last.get(r)
        if not d or kind not in d:
            return 1 << 30
        return self.slot - d[kind] - 1

    def _mark(self, r, kind):
        self.last.setdefault(r, {})[kind] = self.slot

    def __call__(self, text):
        text = text.strip()
        mn, _, rest = text.partition(" ")
        ops = split_ops(rest)
        mods = []
        if ops:
            parts = ops[-1].split()
            ops[-1] = parts[0]
            mods = parts[1:]
        oregs = [regs_of(o) for o in ops]
        for rl in oregs:
            for f, i in rl:
                if f == "v":
                    self.maxv = max(self.maxv, i)
                elif f == "a":
                    self.maxa = max(self.maxa, i)
                elif i < 102:
                    self.maxs = max(self.maxs, i)
        is_mfma = mn.startswith("v_mfma")
        is_valu = mn.startswith("v_") and not is_mfma
        is_vmem = mn.startswith(("buffer_", "global_", "flat_"))
        is_ds = mn.startswith("ds_")
        is_salu = mn.startswith("s_")
        is_store = (is_vmem and ("store" in mn or "atomic" in mn)) or (is_ds and ("write" in mn))
        lds_dma = is_vmem and ("lds" in mods or "_lds_" in mn)
        dst, src = [], []
        if is_mfma:
            dst = oregs[0]
            src = oregs[1] + oregs[2]
            srcC = oregs[3] if len(oregs) > 3 else []
        elif is_valu:
            if mn.startswith("v_cmp"):
                dst = oregs[0]
                src = sum(oregs[1:], [])
            elif mn.startswith(("v_permlane16_swap", "v_permlane32_swap")):
                dst = oregs[0] + oregs[1]
                src = oregs[0] + oregs[1]
            elif mn.startswith(("v_add_co", "v_sub_co", "v_subrev_co", "v_addc_co", "v_subb_co", "v_mad_u64", "v_div_scale")):
                dst = oregs[0] + oregs[1]
                src = sum(oregs[2:], [])
            else:
                dst = oregs[0]
                src = sum(oregs[1:], [])
                if mn.startswith(("v_fmac", "v_dot2c", "v_mac")):
                    src = src + oregs[0]
                if mn.startswith("v_cndmask") and len(ops) == 3:
                    src = src + regs_of("vcc")
        elif is_vmem:
            if lds_dma:
                src = sum(oregs, []) + regs_of("m0")
            elif is_store:
                src = sum(oregs, [])
            else:
                dst = oregs[0]
                src = sum(oregs[1:], [])
        elif is_ds:
            if is_store:
                src = sum(oregs, [])
            else:
                dst = oregs[0]
                src = sum(oregs[1:], [])
        elif is_salu:
            if mn.startswith(("s_cmp", "s_waitcnt", "s_barrier", "s_nop", "s_branch", "s_cbranch", "s_endpgm", "s_setprio", "s_sleep", "s_bitcmp")):
                src = sum(oregs, [])
            else:
                dst = oregs[0] if oregs else []
                src = sum(oregs[1:], [])
        need = 0

        def req(r, kind, w):
            nonlocal need
            d = self._dist(r, kind)
            if d < w:
                need = max(need, w - d)

        is_dpp = any(m.startswith(("row_", "quad_perm", "wave_")) for m in mods) or mn.endswith("_dpp")
        is_perml = mn.startswith("v_permlane")
        is_rdl = mn.startswith(("v_readlane", "v_readfirstlane"))
        if is_mfma:
            for r in src + srcC:
                req(r, "valu", 2)
                req(r, "trans", 2)
                req(r, "dot", 3)
            for r in src:
                req(r, "mfma4", 8)
                req(r, "mfma8", 12)
            if srcC:
                exact = self.last.get(srcC[0], {}).get("mfma_d") == tuple(srcC)
                if not exact:
                    for r in srcC:
                        req(r, "mfma4", 6)
                        req(r, "mfma8", 10)
            if not (srcC and srcC == dst):
                for r in dst:
                    req(r, "mfma4", 6)
                    req(r, "mfma8", 10)
        else:
            if is_valu or is_vmem or is_ds:
                for r in src + dst:
                    req(r, "mfma4", 8)
                    req(r, "mfma8", 12)
            if is_valu:
                tr = mn.split("_e32")[0].split("_e64")[0] in TRANS
                for r in src:
                    if not tr:
                        req(r, "trans", 1)
                    if r[0] == "s":
                        req(r, "valu_s", 2)
                    if not mn.startswith("v_dot2"):
                        req(r, "dot", 3)
                    else:
                        pass
                    if is_dpp or is_perml:
                        req(r, "valu", 2)
                        req(r, "trans", 2)
                    if is_rdl:
                        req(r, "valu", 1)
                        req(r, "trans", 1)
                for r in dst:
                    req(r, "mfmaC4", 3)
                    req(r, "mfmaC8", 7)
                    req(r, "stdata", 2)
                    if not mn.startswith("v_dot2"):
                        req(r, "dot", 3)
            if is_vmem or is_ds:
                for r in src:
                    if r[0] == "s":
                        req(r, "valu_s", 5)
                    req(r, "dot", 3)
                    req(r, "trans", 1)
                for r in dst:
                    req(r, "stdata", 1)
                if lds_dma:
                    req(("s", 124), "m0", 1)
            if is_salu:
                for r in src:
                    req(r, "valu_s", 2)
        self.nop(need)
        self.lines.append("    " + text)
        if is_mfma:
            k = "mfma8" if "32x32" in mn else "mfma4"
            for r in dst:
                self.last.setdefault(r, {}).pop("valu", None)
                self._mark(r, k)
                self.last[r]["mfma_d"] = tuple(dst)
            for r in srcC:
                self._mark(r, "mfmaC8" if "32x32" in mn else "mfmaC4")
        elif is_valu:
            tr = mn.split("_e32")[0].split("_e64")[0] in TRANS
            for r in dst:
                d = self.last.setdefault(r, {})
                d.pop("mfma_d", None)
                if r[0] == "s":
                    self._mark(r, "valu_s")
                elif mn.startswith("v_dot2"):
                    self._mark(r, "dot")
                    self._mark(r, "valu")
                elif tr:
                    self._mark(r, "trans")
                    self._mark(r, "valu")
                else:
                    self._mark(r, "valu")
        elif is_salu:
            for r in dst:
                if r == ("s", 124):
                    self._mark(r, "m0")
        if (is_vmem or is_ds) and not is_store:
            for r in dst:
                self.last.setdefault(r, {}).pop("mfma_d", None)
        if is_vmem and is_store and ("x4" in mn or "x3" in mn):
            for r in oregs[0] if mn.startswith("buffer_") else oregs[1]:
                self._mark(r, "stdata")
        if mn == "s_nop":
            self.slot += int(ops[0]) + 1
        else:
            self.slot += 1
        if mn.startswith(("s_branch", "s_cbranch")):
            pass

    def branch(self, text):
        self.flush()
        self(text)

    def text(self):
        return "\n".join(self.lines) + "\n"


def kernel_header(name):
    return f""".globl {name}
.p2align 8
.type {name},@function
{name}:
"""


def kernel_desc(name, nv, na, ns):
    acc = max(4, (nv + 3) // 4 * 4)
    nfv = acc + na if na else nv
    return f""".p2align 6
.amdhsa_kernel {name}
  .amdhsa_next_free_vgpr {nfv}
  .amdhsa_next_free_sgpr {max(ns, 16)}
  .amdhsa_accum_offset {acc}
  .amdhsa_group_segment_fixed_size 0
  .amdhsa_kernarg_size 96
  .amdhsa_user_sgpr_count 2
  .amdhsa_user_sgpr_kernarg_segment_ptr 1
  .amdhsa_system_sgpr_workgroup_id_x 1
.end_amdhsa_kernel
"""
```

```python
import sys, math
from asmlib import Asm, kernel_header, kernel_desc

MB = 1 << 20
U_OFF, GU = 0, 8448
YT_OFF = 4 * MB
WQ_OFF = 6 * MB
WO_OFF = 8 * MB
QF_OFF = 10 * MB
KF_OFF = 12 * MB
VF_OFF = 14 * MB
OF_OFF = 16 * MB
X1_OFF = 18 * MB
X2_OFF = 20 * MB
X3_OFF = 22 * MB
XBYTES = 2048 * 896
NEG = "0xf149f2ca"

P_Q, P_K, P_V, P_SH, P_SK, P_SD, P_BX, P_WQKV, P_WO, P_OUT, P_DBG, P_WS = [16 + 2 * i for i in range(12)]


def load_ptrs(a):
    a("s_load_dwordx16 s[16:31], s[0:1], 0")
    a("s_load_dwordx8 s[32:39], s[0:1], 64")


def srd(a, d, p, off=0, size=0x7fffffff, soff=None):
    if off == 0 and soff is None:
        a(f"s_mov_b32 s{d}, s{p}")
        a(f"s_mov_b32 s{d+1}, s{p+1}")
    else:
        if off:
            a(f"s_add_u32 s{d}, s{p}, {off}")
            a(f"s_addc_u32 s{d+1}, s{p+1}, 0")
            if soff is not None:
                a(f"s_add_u32 s{d}, s{d}, s{soff}")
                a(f"s_addc_u32 s{d+1}, s{d+1}, 0")
        else:
            a(f"s_add_u32 s{d}, s{p}, s{soff}")
            a(f"s_addc_u32 s{d+1}, s{p+1}, 0")
    a(f"s_mov_b32 s{d+2}, {size}")
    a(f"s_mov_b32 s{d+3}, 0x00020000")


def vr(b, n=4):
    return f"v[{b}:{b+n-1}]"


def ar(b, n=4):
    return f"a[{b}:{b+n-1}]"


def unpack(a, lo, hi, src):
    a(f"v_lshlrev_b32 v{lo}, 16, v{src}")
    a(f"v_and_b32 v{hi}, 0xffff0000, v{src}")


def round2(a, x, y, tmp):
    a(f"v_cvt_pk_bf16_f32 v{tmp}, v{x}, v{y}")
    unpack(a, x, y, tmp)


def gen_k0():
    a = Asm()
    a("s_cmp_ge_u32 s2, 448")
    a.branch("s_cbranch_scc1 k0_end")
    load_ptrs(a)
    a("v_lshrrev_b32 v1, 6, v0")
    a("s_cmp_ge_u32 s2, 224")
    a.branch("s_cbranch_scc1 k0_pack")
    a("s_lshr_b32 s3, s2, 5")
    a("s_and_b32 s4, s2, 31")
    a("v_and_b32 v1, 31, v0")
    a("v_lshrrev_b32 v2, 5, v0")
    a("s_lshl_b32 s5, s4, 6")
    a("v_lshl_add_u32 v3, v2, 3, s5")
    a("s_lshl_b32 s6, s3, 7")
    a("v_lshl_add_u32 v4, v1, 2, s6")
    a("s_movk_i32 s7, 896")
    a("v_mad_u32_u24 v5, v3, s7, v4")
    a("v_subrev_u32 v6, 2688, v5")
    a("v_subrev_u32 v7, 1792, v5")
    a("v_subrev_u32 v8, 896, v5")
    a("v_add_u32 v9, 4480, v5")
    a("v_lshlrev_b32 v10, 2, v4")
    a("s_waitcnt lgkmcnt(0)")
    srd(a, 40, P_K, size=XBYTES)
    srd(a, 44, P_V, size=XBYTES)
    srd(a, 48, P_SH, size=448 * 8)
    srd(a, 52, P_WS, U_OFF, size=448 * GU)
    K0 = 16
    V0 = 28
    S0 = 36
    a(f"buffer_load_dwordx4 {vr(S0)}, v10, s[48:51], 0 offen")
    a(f"buffer_load_dword v{K0+0}, v6, s[40:43], 0 offen")
    a(f"buffer_load_dword v{K0+1}, v7, s[40:43], 0 offen")
    a(f"buffer_load_dword v{K0+2}, v8, s[40:43], 0 offen")
    for i in range(5):
        a(f"buffer_load_dword v{K0+3+i}, v5, s[40:43], 0 offen offset:{896*i}")
    for i in range(3):
        a(f"buffer_load_dword v{K0+8+i}, v9, s[40:43], 0 offen offset:{896*i}")
    for i in range(5):
        a(f"buffer_load_dword v{V0+i}, v5, s[44:47], 0 offen offset:{896*i}")
    for i in range(3):
        a(f"buffer_load_dword v{V0+5+i}, v9, s[44:47], 0 offen offset:{896*i}")
    a("v_lshrrev_b32 v11, 1, v4")
    a(f"s_movk_i32 s8, {GU}")
    a("v_mul_lo_u32 v11, v11, s8")
    a("v_lshlrev_b32 v12, 1, v3")
    a("v_sub_u32 v11, v11, v12")
    a("v_add_u32 v12, 8304, v11")
    a("v_add_u32 v13, 4136, v11")
    a("v_add_u32 v14, 4144, v11")
    a("v_add_u32 v15, 8232, v11")
    a("v_cmp_eq_u32 vcc, 2040, v3")
    a("v_cndmask_b32 v13, v13, v15, vcc")
    KF_ = 40
    WF = 64
    VF_ = 72
    a("s_waitcnt vmcnt(19)")
    unpack(a, WF + 0, WF + 1, S0 + 0)
    unpack(a, WF + 2, WF + 3, S0 + 1)
    unpack(a, WF + 4, WF + 5, S0 + 2)
    unpack(a, WF + 6, WF + 7, S0 + 3)
    a("s_waitcnt vmcnt(8)")
    for i in range(11):
        unpack(a, KF_ + i, KF_ + 11 + i, K0 + i)
    a("s_waitcnt vmcnt(0)")
    for i in range(8):
        unpack(a, VF_ + i, VF_ + 8 + i, V0 + i)
    R = 90
    T = 110
    for t in range(8):
        xa, xb = R + t, R + 8 + t
        for tt in range(4):
            pa, pb = (xa, xb) if tt == 0 else (T, T + 1)
            a(f"v_mul_f32 v{pa}, v{KF_+t+tt}, v{WF+3-tt}")
            a(f"v_mul_f32 v{pb}, v{KF_+11+t+tt}, v{WF+4+3-tt}")
            round2(a, pa, pb, T + 2)
            if tt:
                a(f"v_add_f32 v{xa}, v{xa}, v{pa}")
                a(f"v_add_f32 v{xb}, v{xb}, v{pb}")
                round2(a, xa, xb, T + 2)
        a(f"v_mul_f32 v{xa}, v{xa}, v{VF_+t}")
        a(f"v_mul_f32 v{xb}, v{xb}, v{VF_+8+t}")
    O = 112
    for c in range(2):
        for j in range(4):
            a(f"v_cvt_pk_bf16_f32 v{O+4*c+j}, v{R+8*c+7-2*j}, v{R+8*c+6-2*j}")
    for c in range(2):
        a(f"v_cndmask_b32 v{120+2*c}, v{O+4*c}, 0, vcc")
        a(f"v_cndmask_b32 v{121+2*c}, v{O+4*c+1}, 0, vcc")
    a(f"s_movk_i32 s9, {GU}")
    a(f"buffer_store_dwordx4 {vr(O)}, v12, s[52:55], 0 offen")
    a(f"buffer_store_dwordx4 {vr(O+4)}, v12, s[52:55], s9 offen")
    a(f"buffer_store_dwordx2 v[120:121], v13, s[52:55], 0 offen")
    a(f"buffer_store_dwordx2 v[122:123], v13, s[52:55], s9 offen")
    a(f"buffer_store_dwordx2 v[{O+2}:{O+3}], v14, s[52:55], 0 offen")
    a(f"buffer_store_dwordx2 v[{O+6}:{O+7}], v14, s[52:55], s9 offen")
    a("s_endpgm")
    a.label("k0_pack")
    a("v_readfirstlane_b32 s3, v1")
    a("v_and_b32 v2, 15, v0")
    a("v_bfe_u32 v3, v0, 4, 2")
    a("v_and_b32 v8, 63, v0")
    a("v_lshlrev_b32 v8, 4, v8")
    a("v_lshrrev_b32 v4, 2, v2")
    a("v_and_b32 v5, 3, v2")
    a("v_lshl_add_u32 v4, v4, 3, v5")
    a("s_cmp_ge_u32 s2, 392")
    a.branch("s_cbranch_scc1 k0_packo")
    a("s_sub_u32 s4, s2, 224")
    a("s_lshl_b32 s4, s4, 2")
    a("s_add_u32 s4, s4, s3")
    a("s_mul_i32 s5, s4, 9363")
    a("s_lshr_b32 s5, s5, 16")
    a("s_mul_i32 s6, s5, 7")
    a("s_sub_u32 s6, s4, s6")
    a("s_mul_i32 s7, s5, 5462")
    a("s_lshr_b32 s7, s7, 16")
    a("s_mul_i32 s8, s7, 12")
    a("s_sub_u32 s8, s5, s8")
    a("s_mul_i32 s9, s8, 21846")
    a("s_lshr_b32 s9, s9, 16")
    a("s_mul_i32 s10, s9, 3")
    a("s_sub_u32 s10, s8, s10")
    a("s_lshl_b32 s11, s7, 2")
    a("s_add_u32 s11, s11, s9")
    a("s_mul_i32 s11, s11, 28")
    a("s_lshl_b32 s12, s7, 1")
    a("s_lshr_b32 s13, s9, 1")
    a("s_add_u32 s12, s12, s13")
    a("s_mul_i32 s12, s12, 28")
    a("s_add_u32 s12, s12, 896")
    a("s_and_b32 s13, s9, 1")
    a("s_cmp_lt_u32 s10, 2")
    a("s_cselect_b32 s11, s11, s12")
    a("s_cselect_b32 s13, s10, s13")
    a("s_lshl_b32 s13, s13, 2")
    a("v_add_u32 v4, s13, v4")
    a("v_add_u32 v5, s11, v4")
    a("v_lshlrev_b32 v5, 1, v5")
    a("s_movk_i32 s14, 21504")
    a("v_mad_u32_u24 v5, v3, s14, v5")
    a("v_mov_b32 v6, 0x80000000")
    a("v_cmp_gt_u32 vcc, 28, v4")
    a("v_cndmask_b32 v5, v6, v5, vcc")
    a("s_mul_i32 s15, s6, 172032")
    a("s_waitcnt lgkmcnt(0)")
    srd(a, 40, P_WQKV, size=448 * 2688)
    srd(a, 44, P_WS, WQ_OFF, size=96 * 14 * 1024)
    for kk in range(2):
        for e in range(8):
            a(f"s_add_u32 s{48+kk*8+e}, s15, {kk*86016+e*2688}")
    for kk in range(2):
        for e in range(8):
            a(f"buffer_load_ushort v{16+kk*8+e}, v5, s[40:43], s{48+kk*8+e} offen")
    a("s_mul_i32 s4, s5, 14336")
    a("s_lshl_b32 s6, s6, 11")
    a("s_add_u32 s4, s4, s6")
    for kk in range(2):
        a(f"s_waitcnt vmcnt({8-8*kk})")
        for j in range(4):
            a(f"v_lshl_or_b32 v{32+kk*4+j}, v{16+kk*8+2*j+1}, 16, v{16+kk*8+2*j}")
        a(f"buffer_store_dwordx4 {vr(32+kk*4)}, v8, s[44:47], s4 offen offset:{1024*kk}")
    a("s_endpgm")
    a.label("k0_packo")
    a("s_sub_u32 s4, s2, 392")
    a("s_lshl_b32 s4, s4, 2")
    a("s_add_u32 s4, s4, s3")
    a("s_lshr_b32 s5, s4, 3")
    a("s_and_b32 s6, s4, 7")
    a("s_lshr_b32 s7, s5, 1")
    a("s_lshl_b32 s7, s7, 5")
    a("s_and_b32 s8, s5, 1")
    a("s_lshl_b32 s8, s8, 2")
    a("s_add_u32 s7, s7, s8")
    a("v_add_u32 v5, s7, v4")
    a("v_lshlrev_b32 v5, 1, v5")
    a("s_movk_i32 s14, 7168")
    a("v_mad_u32_u24 v5, v3, s14, v5")
    a("v_mov_b32 v6, 0x80000000")
    a("v_cmp_gt_u32 vcc, 3, v3")
    a("v_cndmask_b32 v7, v6, v5, vcc")
    a("s_mul_i32 s15, s6, 50176")
    a("s_waitcnt lgkmcnt(0)")
    srd(a, 40, P_WO, size=448 * 896)
    srd(a, 44, P_WS, WO_OFF, size=28 * 16 * 1024)
    for kk in range(2):
        for e in range(8):
            a(f"s_add_u32 s{48+kk*8+e}, s15, {kk*25088+e*896}")
    for kk in range(2):
        for e in range(8):
            a(f"buffer_load_ushort v{16+kk*8+e}, v{5 if e < 4 else 7}, s[40:43], s{48+kk*8+e} offen")
    a("s_lshl_b32 s4, s5, 14")
    a("s_lshl_b32 s6, s6, 11")
    a("s_add_u32 s4, s4, s6")
    for kk in range(2):
        a(f"s_waitcnt vmcnt({8-8*kk})")
        for j in range(4):
            a(f"v_lshl_or_b32 v{32+kk*4+j}, v{16+kk*8+2*j+1}, 16, v{16+kk*8+2*j}")
        a(f"buffer_store_dwordx4 {vr(32+kk*4)}, v8, s[44:47], s4 offen offset:{1024*kk}")
    a.label("k0_end")
    a("s_endpgm")
    return a


CSA = 4160
CSB = 4640
BOFF = 4 * CSA
CHS = 4 * CSA + 2 * CSB
K1_RED = 2 * CHS
K1_LDS = K1_RED + 16384


def gen_k1():
    a = Asm()
    a("s_cmp_ge_u32 s2, 224")
    a.branch("s_cbranch_scc1 k1_end")
    load_ptrs(a)
    a("v_lshrrev_b32 v1, 6, v0")
    a("v_and_b32 v2, 63, v0")
    a("v_readfirstlane_b32 s3, v1")
    a("v_lshlrev_b32 v3, 4, v0")
    a("v_lshlrev_b32 v4, 4, v2")
    a("v_subrev_u32 v5, 64, v3")
    a("v_subrev_u32 v6, 48, v3")
    a("s_lshl_b32 s4, s2, 13")
    a(f"s_mul_i32 s5, s2, {2*GU}")
    a("s_lshl_b32 s6, s2, 2")
    a("s_waitcnt lgkmcnt(0)")
    a(f"s_add_u32 s8, s{P_SD}, s6")
    a(f"s_addc_u32 s9, s{P_SD+1}, 0")
    a("s_load_dword s7, s[8:9], 0")
    srd(a, 40, P_SK, size=4096, soff=4)
    a("s_add_u32 s44, s40, 4096")
    a("s_addc_u32 s45, s41, 0")
    a("s_mov_b32 s46, 4096")
    a("s_mov_b32 s47, 0x00020000")
    srd(a, 48, P_WS, U_OFF, size=2 * GU, soff=5)
    srd(a, 52, P_WS, YT_OFF, size=8192, soff=4)
    a("buffer_load_dwordx4 v[16:19], v5, s[40:43], 0 offen")
    a("buffer_load_dwordx4 v[20:23], v6, s[40:43], 0 offen")
    a("buffer_load_dwordx4 v[24:27], v5, s[44:47], 0 offen")
    a("buffer_load_dwordx4 v[28:31], v6, s[44:47], 0 offen")
    a("v_add_u32 v7, 4096, v5")
    a("v_add_u32 v8, 4096, v6")
    a("buffer_load_dwordx4 v[32:35], v7, s[40:43], 0 offen")
    a("buffer_load_dwordx4 v[36:39], v8, s[40:43], 0 offen")
    a("buffer_load_dwordx4 v[40:43], v7, s[44:47], 0 offen")
    a("buffer_load_dwordx4 v[44:47], v8, s[44:47], 0 offen")
    a("s_and_b32 s10, s3, 1")
    a("s_lshr_b32 s11, s3, 1")
    a(f"s_mul_i32 s12, s10, {GU}")
    a("s_mul_i32 s13, s11, 4160")
    a("s_add_u32 s12, s12, s13")
    a("s_add_u32 s12, s12, 64")
    a(f"s_mul_i32 s14, s10, {CHS}")
    a(f"s_mul_i32 s15, s11, {CSB}")
    a("s_add_u32 s15, s15, s14")
    a(f"s_add_u32 s15, s15, {BOFF}")
    a("s_mov_b32 m0, s15")
    for i in range(4):
        a(f"buffer_load_dwordx4 v4, s[48:51], s12 offen offset:{1024*i} lds")
    a("v_mov_b32 v48, 0")
    a("v_mov_b32 v49, 0")
    a("v_mov_b32 v50, 0")
    a("v_mov_b32 v51, 0")
    a("v_add_u32 v9, s15, v4")
    a("v_cmp_gt_u32 vcc, 28, v2")
    a("s_and_saveexec_b64 s[56:57], vcc")
    a("ds_write_b128 v9, v[48:51] offset:4096")
    a("s_mov_b64 exec, s[56:57]")
    a("v_and_b32 v10, 15, v2")
    a("v_lshrrev_b32 v11, 4, v2")
    a("v_and_b32 v12, 3, v10")
    a(f"s_movk_i32 s58, {CSA}")
    a("v_mul_lo_u32 v12, v12, s58")
    a("v_lshrrev_b32 v13, 2, v10")
    a("v_add_u32 v13, v13, v11")
    a("v_lshl_add_u32 v12, v13, 4, v12")
    a("s_lshl_b32 s59, s11, 8")
    a("s_add_u32 s59, s59, s14")
    a("v_add_u32 v12, s59, v12")
    a("v_and_b32 v13, 1, v10")
    a(f"s_movk_i32 s58, {CSB}")
    a("v_mul_lo_u32 v13, v13, s58")
    a("v_lshrrev_b32 v14, 1, v10")
    a("v_lshlrev_b32 v14, 6, v14")
    a("v_sub_u32 v13, v13, v14")
    a("v_lshl_add_u32 v13, v11, 4, v13")
    a(f"s_add_u32 s59, s59, {BOFF+448}")
    a("v_add_u32 v13, s59, v13")

    def build_copies(D, addr, chb, extra_off):
        T = 52
        a(f"v_alignbit_b32 v{T+0}, v{D+3}, v{D+2}, 16")
        a(f"v_alignbit_b32 v{T+1}, v{D+4}, v{D+3}, 16")
        a(f"v_alignbit_b32 v{T+2}, v{D+5}, v{D+4}, 16")
        a(f"v_alignbit_b32 v{T+3}, v{D+6}, v{D+5}, 16")
        a(f"v_mov_b32 v{T+4}, v{T+1}")
        a(f"v_mov_b32 v{T+5}, v{T+2}")
        a(f"v_mov_b32 v{T+6}, v{T+3}")
        a(f"v_alignbit_b32 v{T+7}, v{D+7}, v{D+6}, 16")
        a(f"v_mov_b32 v{T+8}, v{D+3}")
        a(f"v_mov_b32 v{T+9}, v{D+4}")
        a(f"v_mov_b32 v{T+10}, v{D+5}")
        a(f"v_mov_b32 v{T+11}, v{D+6}")
        a(f"ds_write_b128 v{addr}, {vr(T)} offset:{chb+0*CSA+extra_off}")
        a(f"ds_write_b128 v{addr}, {vr(T+8)} offset:{chb+1*CSA+extra_off}")
        a(f"ds_write_b128 v{addr}, {vr(T+4)} offset:{chb+2*CSA+extra_off}")
        a(f"ds_write_b128 v{addr}, {vr(D+4)} offset:{chb+3*CSA+extra_off}")

    a("s_waitcnt vmcnt(10)")
    build_copies(16, 3, 0, 0)
    a("s_waitcnt vmcnt(8)")
    build_copies(24, 3, CHS, 0)
    a("s_waitcnt vmcnt(4)")
    a("v_cmp_gt_u32 vcc, 3, v0")
    a("s_and_saveexec_b64 s[56:57], vcc")
    build_copies(32, 3, 0, 4096)
    build_copies(40, 3, CHS, 4096)
    a("s_mov_b64 exec, s[56:57]")
    a("s_waitcnt vmcnt(0) lgkmcnt(0)")
    a("s_barrier")
    ACC = 16
    FA = [64, 128]
    FB = [96, 160]

    def reads(r, buf):
        for i in range(8):
            a(f"ds_read_b128 {vr(FA[buf]+4*i)}, v12 offset:{64*r+512*i}")
            a(f"ds_read_b128 {vr(FB[buf]+4*i)}, v13 offset:{64*r+512*(7-i)}")

    reads(0, 0)
    for r in range(4):
        buf = r & 1
        if r < 3:
            reads(r + 1, buf ^ 1)
            a("s_waitcnt lgkmcnt(15)")
        else:
            a("s_waitcnt lgkmcnt(0)")
        for aa in range(8):
            for n in range(aa, 8):
                c = "0" if (r == 0 and aa == 0) else vr(ACC + 4 * n)
                a(f"v_mfma_f32_16x16x32_bf16 {vr(ACC+4*n)}, {vr(FA[buf]+4*aa)}, {vr(FB[buf]+4*(n-aa))}, {c}")
    a("s_lshl_b32 s58, s3, 12")
    a(f"s_add_u32 s58, s58, {K1_RED}")
    a("v_add_u32 v5, s58, v4")
    a("s_xor_b32 s59, s3, 2")
    a("s_lshl_b32 s59, s59, 12")
    a(f"s_add_u32 s59, s59, {K1_RED}")
    a("v_add_u32 v6, s59, v4")
    a("v_lshrrev_b32 v7, 1, v10")
    a("v_lshlrev_b32 v7, 5, v7")
    a("v_lshl_add_u32 v7, v11, 3, v7")
    a("v_and_b32 v8, 1, v10")
    a("v_lshl_add_u32 v7, v8, 2, v7")
    a("s_lshl_b32 s60, s11, 10")
    a("v_add_u32 v7, s60, v7")
    a("v_lshlrev_b32 v8, 1, v7")
    a(f"s_add_u32 s61, s14, {BOFF+CSB+4088-1536}")
    a("v_sub_u32 v9, s61, v8")
    a("s_lshl_b32 s62, s10, 12")
    a("v_add_u32 v8, s62, v8")
    a("s_lshl_b32 s63, s7, 16")
    a("s_and_b32 s64, s7, 0xffff0000")
    a("s_cmp_eq_u32 s10, 0")
    a("s_cselect_b32 s63, s63, s64")
    a("s_cmp_eq_u32 s11, 0")
    a.branch("s_cbranch_scc1 k1_r0")
    for variant in (1, 0):
        if variant == 0:
            a.label("k1_r0")
        keep = ACC + 16 * variant
        send = ACC + 16 * (1 - variant)
        for j in range(4):
            a(f"ds_write_b128 v5, {vr(send+4*j)} offset:{1024*j}")
        for j in range(4):
            a(f"ds_read_b64 v[{96+2*j}:{97+2*j}], v9 offset:{512*(3-j)}")
        a("s_waitcnt lgkmcnt(0)")
        a("s_barrier")
        for j in range(4):
            a(f"ds_read_b128 {vr(64+4*j)}, v6 offset:{1024*j}")
        for j in range(4):
            unpack(a, 107, 106, 96 + 2 * j)
            unpack(a, 105, 104, 97 + 2 * j)
            for e in range(4):
                a(f"v_mul_f32 v{104+e}, s63, v{104+e}")
            round2(a, 104, 105, 108)
            round2(a, 106, 107, 108)
            a(f"s_waitcnt lgkmcnt({3-j})")
            for e in range(4):
                a(f"v_add_f32 v{keep+4*j+e}, v{keep+4*j+e}, v{64+4*j+e}")
            round2(a, keep + 4 * j, keep + 4 * j + 1, 108)
            round2(a, keep + 4 * j + 2, keep + 4 * j + 3, 108)
            for e in range(4):
                a(f"v_add_f32 v{keep+4*j+e}, v{keep+4*j+e}, v{104+e}")
            a(f"v_cvt_pk_bf16_f32 v{110+2*j}, v{keep+4*j}, v{keep+4*j+1}")
            a(f"v_cvt_pk_bf16_f32 v{111+2*j}, v{keep+4*j+2}, v{keep+4*j+3}")
            a(f"buffer_store_dwordx2 v[{110+2*j}:{111+2*j}], v8, s[52:55], 0 offen offset:{512*j}")
        a("s_endpgm")
    a.label("k1_end")
    a("s_endpgm")
    return a


YL, HL, STL = 0, 57344, 114688
K2_LDS = STL + 2048


def xlane_sum(a, x, t):
    a(f"v_mov_b32 v{t}, v{x}")
    a(f"v_permlane16_swap_b32 v{x}, v{t}")
    a(f"v_add_f32 v{x}, v{x}, v{t}")
    a(f"v_mov_b32 v{t}, v{x}")
    a(f"v_permlane32_swap_b32 v{x}, v{t}")
    a(f"v_add_f32 v{x}, v{x}, v{t}")


def xlane_max(a, x, t):
    a(f"v_mov_b32 v{t}, v{x}")
    a(f"v_permlane16_swap_b32 v{x}, v{t}")
    a(f"v_max_f32 v{x}, v{x}, v{t}")
    a(f"v_mov_b32 v{t}, v{x}")
    a(f"v_permlane32_swap_b32 v{x}, v{t}")
    a(f"v_max_f32 v{x}, v{x}, v{t}")


def ln_params(a, s1, s2, r, nmr, t):
    a(f"v_mul_f32 v{s1}, s70, v{s1}")
    a(f"v_mul_f32 v{s2}, s70, v{s2}")
    a(f"v_fma_f32 v{s2}, -v{s1}, v{s1}, v{s2}")
    a(f"v_max_f32 v{s2}, 0, v{s2}")
    round2(a, s1, s2, t)
    a(f"v_add_f32 v{s2}, s71, v{s2}")
    round2(a, s1, s2, t)
    a(f"v_sqrt_f32 v{s2}, v{s2}")
    round2(a, s1, s2, t)
    a(f"v_rcp_f32 v{r}, v{s2}")
    a(f"v_mul_f32 v{nmr}, -v{s1}, v{r}")


def gen_k2(name, layer):
    a = Asm()
    a("s_cmp_ge_u32 s2, 256")
    a.branch(f"s_cbranch_scc1 {name}_end")
    load_ptrs(a)
    a("v_lshrrev_b32 v1, 6, v0")
    a("v_and_b32 v2, 63, v0")
    a("v_readfirstlane_b32 s3, v1")
    a("v_and_b32 v3, 15, v2")
    a("v_lshrrev_b32 v4, 4, v2")
    a("v_lshlrev_b32 v5, 4, v2")
    a("s_and_b32 s4, s2, 7")
    a("s_lshr_b32 s5, s2, 3")
    a("s_lshl_b32 s4, s4, 2")
    a("s_lshr_b32 s6, s5, 3")
    a("s_add_u32 s4, s4, s6")
    a("s_and_b32 s5, s5, 7")
    a("s_lshr_b32 s6, s3, 1")
    a("s_and_b32 s7, s3, 1")
    a("s_mov_b32 s70, 0x3b124925")
    a("s_mov_b32 s71, 0x3727c5ac")
    a("s_mov_b32 s72, 0x3f803f80")
    a("s_lshl_b32 s8, s4, 6")
    a("s_lshl_b32 s9, s6, 4")
    a("s_add_u32 s8, s8, s9")
    a("v_add_u32 v6, s8, v3")
    a("s_movk_i32 s9, 896")
    a("v_mul_lo_u32 v6, v6, s9")
    a("s_mul_i32 s10, s7, 448")
    a("v_lshl_add_u32 v6, v4, 4, v6")
    a("v_add_u32 v6, s10, v6")
    a("v_bfe_u32 v7, v2, 1, 2")
    a("v_bfe_u32 v8, v2, 4, 1")
    a("v_xor_b32 v7, v7, v8")
    a("v_and_b32 v8, 1, v2")
    a("v_lshl_add_u32 v7, v7, 1, v8")
    a("s_lshl_b32 s11, s7, 2")
    a("v_xor_b32 v7, s11, v7")
    a("v_lshrrev_b32 v8, 3, v2")
    a("v_lshlrev_b32 v8, 12, v8")
    a("v_lshl_add_u32 v7, v7, 4, v8")
    a("s_lshl_b32 s11, s4, 7")
    a("v_add_u32 v7, s11, v7")
    a("v_xor_b32 v8, 64, v7")
    a("s_waitcnt lgkmcnt(0)")
    if layer == 0:
        srd(a, 40, P_Q, size=XBYTES)
    else:
        srd(a, 40, P_WS, X2_OFF, size=XBYTES)
    srd(a, 44, P_WS, YT_OFF, size=448 * 4096)
    srd(a, 48, P_WS, WQ_OFF, size=96 * 14336)
    srd(a, 52, P_WS, X1_OFF if layer == 0 else X3_OFF, size=XBYTES)
    srd(a, 56, P_WS, QF_OFF, size=6 * MB)
    X = 16
    for i in range(7):
        a(f"buffer_load_dwordx4 {vr(X+4*i)}, v6, s[40:43], 0 offen offset:{64*i}")
    a("s_mul_i32 s12, s3, 7")
    for j in range(7):
        a(f"s_add_u32 s13, s12, {j}")
        a("s_lshl_b32 s14, s13, 10")
        a("s_lshl_b32 s13, s13, 15")
        a("s_mov_b32 m0, s14")
        a(f"buffer_load_dwordx4 v{7 if j % 2 == 0 else 8}, s[44:47], s13 offen lds")
    a("s_lshl_b32 s13, s5, 2")
    a("s_add_u32 s13, s13, s6")
    a("s_mul_i32 s14, s13, 43008")
    a("s_mul_i32 s15, s7, 7168")
    a("s_add_u32 s14, s14, s15")
    a("s_add_u32 s15, s14, 14336")
    a("s_add_u32 s60, s14, 28672")
    for i in range(7):
        off = 1024 * i
        for tile, sreg in enumerate((14, 15, 60)):
            if off < 4096:
                a(f"buffer_load_dwordx4 {ar((i*3+tile)*4)}, v5, s[48:51], s{sreg} offen offset:{off}")
            else:
                a(f"buffer_load_dwordx4 {ar((i*3+tile)*4)}, v9, s[48:51], s{sreg} offen offset:{off-4096}")
        if i == 0:
            a("v_add_u32 v9, 4096, v5")
    a("v_bfe_u32 v10, v2, 2, 2")
    a("v_lshl_add_u32 v11, v4, 3, v10")
    a("v_lshlrev_b32 v11, 7, v11")
    a("v_lshrrev_b32 v10, 1, v10")
    a("v_and_b32 v12, 1, v4")
    a("v_lshl_or_b32 v10, v12, 1, v10")
    a("v_xor_b32 v10, s6, v10")
    a("v_lshl_add_u32 v11, v10, 5, v11")
    a("v_and_b32 v10, 3, v2")
    a("v_lshl_add_u32 v11, v10, 3, v11")
    a("s_mul_i32 s61, s7, 28672")
    a("v_add_u32 v11, s61, v11")
    a("s_lshl_b32 s61, s3, 7")
    a(f"s_add_u32 s61, s61, {STL}")
    a("v_lshl_add_u32 v12, v3, 3, s61")
    a("v_xor_b32 v13, 128, v12")
    S1, S2 = 44, 48
    for q in range(4):
        a(f"v_mov_b32 v{S1+q}, 0")
        a(f"v_mov_b32 v{S2+q}, 0")
    for i in range(7):
        a(f"s_waitcnt vmcnt({28+6-i})")
        for q in range(4):
            a(f"v_dot2c_f32_bf16 v{S1+q}, s72, v{X+4*i+q}")
            a(f"v_dot2c_f32_bf16 v{S2+q}, v{X+4*i+q}, v{X+4*i+q}")

    def finish_stats(stage):
        a(f"v_add_f32 v{S1}, v{S1}, v{S1+1}")
        a(f"v_add_f32 v{S1+2}, v{S1+2}, v{S1+3}")
        a(f"v_add_f32 v{S2}, v{S2}, v{S2+1}")
        a(f"v_add_f32 v{S2+2}, v{S2+2}, v{S2+3}")
        a(f"v_add_f32 v{S1}, v{S1}, v{S1+2}")
        a(f"v_add_f32 v{S1+1}, v{S2}, v{S2+2}")
        xlane_sum(a, S1, S1 + 2)
        xlane_sum(a, S1 + 1, S1 + 3)
        a(f"ds_write_b64 v12, v[{S1}:{S1+1}] offset:{1024*stage}")

    finish_stats(0)
    a("s_waitcnt vmcnt(21) lgkmcnt(0)")
    a("s_barrier")
    a(f"ds_read_b64 v[{S1+2}:{S1+3}], v13")
    Y = 52
    for i in range(7):
        a(f"ds_read_b64_tr_b16 v[{Y+4*i}:{Y+4*i+1}], v11 offset:{4096*i}")
        a(f"ds_read_b64_tr_b16 v[{Y+4*i+2}:{Y+4*i+3}], v11 offset:{4096*i+512}")
    a("s_waitcnt lgkmcnt(14)")
    a(f"v_add_f32 v{S1}, v{S1}, v{S1+2}")
    a(f"v_add_f32 v{S1+1}, v{S1+1}, v{S1+3}")
    R, NMR = S2, S2 + 1
    ln_params(a, S1, S1 + 1, R, NMR, S1 + 2)
    XF = 80
    T = 136
    for q in range(4):
        a(f"v_mov_b32 v{T+4+q}, 0")
        a(f"v_mov_b32 v{T+8+q}, 0")
    for i in range(7):
        a(f"s_waitcnt lgkmcnt({12-2*i})")
        for q in range(4):
            lo, hi = XF + 8 * i + 2 * q, XF + 8 * i + 2 * q + 1
            unpack(a, lo, hi, X + 4 * i + q)
            unpack(a, T, T + 1, Y + 4 * i + q)
            a(f"v_fma_f32 v{T+2}, v{lo}, v{R}, v{NMR}")
            a(f"v_fma_f32 v{T+3}, v{hi}, v{R}, v{NMR}")
            a(f"v_fma_f32 v{lo}, v{T+2}, v{T}, v{lo}")
            a(f"v_fma_f32 v{hi}, v{T+3}, v{T+1}, v{hi}")
            a(f"v_cvt_pk_bf16_f32 v{X+4*i+q}, v{lo}, v{hi}")
            a(f"v_dot2c_f32_bf16 v{T+4+q}, s72, v{X+4*i+q}")
            a(f"v_dot2c_f32_bf16 v{T+8+q}, v{X+4*i+q}, v{X+4*i+q}")
    for q in range(4):
        a(f"v_mov_b32 v{S1+q}, v{T+4+q}")
        a(f"v_mov_b32 v{S2+q}, v{T+8+q}")
    finish_stats(1)
    a("s_waitcnt lgkmcnt(0)")
    a("s_barrier")
    a(f"ds_read_b64 v[{S1+2}:{S1+3}], v13 offset:1024")
    a("s_mul_i32 s61, s6, 14336")
    a("s_mul_i32 s62, s7, 7168")
    a("s_add_u32 s61, s61, s62")
    a(f"s_add_u32 s61, s61, {HL}")
    a("v_add_u32 v14, s61, v5")
    a("s_waitcnt lgkmcnt(0)")
    a(f"v_add_f32 v{S1}, v{S1}, v{S1+2}")
    a(f"v_add_f32 v{S1+1}, v{S1+1}, v{S1+3}")
    ln_params(a, S1, S1 + 1, R, NMR, S1 + 2)
    for i in range(7):
        for q in range(4):
            lo, hi = XF + 8 * i + 2 * q, XF + 8 * i + 2 * q + 1
            a(f"v_fma_f32 v{lo}, v{lo}, v{R}, v{NMR}")
            a(f"v_fma_f32 v{hi}, v{hi}, v{R}, v{NMR}")
            a(f"v_cvt_pk_bf16_f32 v{Y+4*i+q}, v{lo}, v{hi}")
        a(f"ds_write_b128 v14, {vr(Y+4*i)} offset:{1024*i}")
    a("s_mul_i32 s61, s7, 35840")
    a(f"s_add_u32 s61, s61, {HL}")
    a("v_add_u32 v10, s61, v5")
    a("s_mul_i32 s61, s7, -21504")
    a(f"s_add_u32 s61, s61, {HL+28672}")
    a("v_add_u32 v11, s61, v5")
    a("s_waitcnt lgkmcnt(0)")
    a("s_barrier")
    ACC = 80
    FR = [128, 144]

    def rd(i, buf):
        for s in range(4):
            a(f"ds_read_b128 {vr(FR[buf]+4*s)}, v{10 if s < 2 else 11} offset:{(s&1)*14336+1024*i}")

    rd(0, 0)
    for i in range(7):
        buf = i & 1
        if i < 6:
            rd(i + 1, buf ^ 1)
            a(f"s_waitcnt vmcnt({18-3*i}) lgkmcnt(4)")
        else:
            a("s_waitcnt vmcnt(0) lgkmcnt(0)")
        for s in range(4):
            for tile in range(3):
                d = vr(ACC + (s * 3 + tile) * 4)
                c = "0" if i == 0 else d
                w = ar((i * 3 + tile) * 4)
                h = vr(FR[buf] + 4 * s)
                if tile < 2:
                    a(f"v_mfma_f32_16x16x32_bf16 {d}, {w}, {h}, {c}")
                else:
                    a(f"v_mfma_f32_16x16x32_bf16 {d}, {h}, {w}, {c}")
    a("s_mul_i32 s61, s3, 6144")
    a("v_add_u32 v10, s61, v5")
    a("s_xor_b32 s62, s3, 1")
    a("s_mul_i32 s62, s62, 6144")
    a("v_add_u32 v11, s62, v5")
    for j in range(6):
        a(f"ds_write_b128 v10, {vr(ACC+24+4*j)} offset:{1024*j}")
    a("s_cmp_lg_u32 s3, s5")
    a.branch(f"s_cbranch_scc1 {name}_nox")
    for i in range(7):
        a(f"buffer_store_dwordx4 {vr(X+4*i)}, v6, s[52:55], 0 offen offset:{64*i}")
    a.label(f"{name}_nox")
    a("s_lshl_b32 s61, s13, 17")
    a("s_lshl_b32 s62, s4, 12")
    a("s_add_u32 s61, s61, s62")
    a("s_lshl_b32 s62, s7, 11")
    a("s_add_u32 s61, s61, s62")
    a("s_lshl_b32 s62, s5, 1")
    a("s_lshr_b32 s63, s6, 1")
    a("s_add_u32 s62, s62, s63")
    a("s_lshl_b32 s62, s62, 6")
    a("s_lshl_b32 s63, s4, 1")
    a("s_add_u32 s62, s62, s63")
    a("s_add_u32 s62, s62, s7")
    a("s_lshl_b32 s62, s62, 1")
    a("s_and_b32 s63, s6, 1")
    a("s_add_u32 s62, s62, s63")
    a("s_lshl_b32 s62, s62, 10")
    a(f"s_add_u32 s62, s62, {VF_OFF-QF_OFF}")
    a("s_lshl_b32 s63, s63, 4")
    a("s_sub_u32 s63, 28, s63")
    a("v_cmp_eq_u32 vcc, s63, v3")
    a("v_mov_b32 v12, s72")
    a("s_waitcnt lgkmcnt(0)")
    a("s_barrier")
    for j in range(6):
        a(f"ds_read_b128 {vr(128+4*j)}, v11 offset:{1024*j}")
    for s in range(2):
        a(f"s_waitcnt lgkmcnt({3-3*s})")
        for k in range(12):
            a(f"v_add_f32 v{ACC+12*s+k}, v{ACC+12*s+k}, v{128+12*s+k}")
        for q in range(4):
            a(f"v_cvt_pk_bf16_f32 v{152+4*s+q}, v{ACC+12*s+2*q}, v{ACC+12*s+2*q+1}")
        a(f"buffer_store_dwordx4 {vr(152+4*s)}, v5, s[56:59], s61 offen offset:{1024*s}")
        for q in range(2):
            a(f"v_cvt_pk_bf16_f32 v{160+2*s+q}, v{ACC+12*s+8+2*q}, v{ACC+12*s+8+2*q+1}")
    for q in range(4):
        a(f"v_cndmask_b32 v{160+q}, v{160+q}, v12, vcc")
    a(f"buffer_store_dwordx4 {vr(160)}, v5, s[56:59], s62 offen")
    a.label(f"{name}_end")
    a("s_endpgm")
    return a


K3_LDS = 49152
CSCALE = 28 ** -0.5 * math.log2(math.e)


def f32hex(x):
    import struct
    return "0x%08x" % struct.unpack("<I", struct.pack("<f", x))[0]


def gen_k3():
    a = Asm()
    name = "k3"
    a("s_cmp_ge_u32 s2, 256")
    a.branch(f"s_cbranch_scc1 {name}_end")
    load_ptrs(a)
    a("v_lshrrev_b32 v1, 6, v0")
    a("v_and_b32 v2, 63, v0")
    a("v_readfirstlane_b32 s3, v1")
    a("v_and_b32 v3, 15, v2")
    a("v_lshrrev_b32 v4, 4, v2")
    a("v_lshlrev_b32 v5, 4, v2")
    a("s_and_b32 s4, s2, 7")
    a("s_lshr_b32 s5, s2, 3")
    a("s_lshl_b32 s4, s4, 1")
    a("s_lshr_b32 s6, s5, 4")
    a("s_add_u32 s4, s4, s6")
    a("s_and_b32 s5, s5, 15")
    a("s_lshl_b32 s6, s5, 17")
    a("s_lshl_b32 s7, s4, 3")
    a("s_mul_i32 s8, s3, 3")
    a("s_add_u32 s9, s7, s8")
    a("s_sub_u32 s9, s9, 16")
    a("s_lshl_b32 s9, s9, 10")
    a("v_add_u32 v6, s9, v5")
    a("v_add_u32 v7, 1024, v6")
    a("v_add_u32 v8, 2048, v6")
    a("s_add_u32 s10, s7, s3")
    a("s_lshl_b32 s11, s10, 10")
    a("s_waitcnt lgkmcnt(0)")
    srd(a, 40, P_WS, QF_OFF, size=131072, soff=6)
    srd(a, 44, P_WS, KF_OFF, size=131072, soff=6)
    srd(a, 48, P_WS, VF_OFF, size=131072, soff=6)
    srd(a, 52, P_WS, OF_OFF, size=2 * MB)
    QR = 12
    a(f"buffer_load_dwordx4 {vr(QR)}, v5, s[40:43], s11 offen")
    a("s_lshl_b32 s12, s8, 10")
    for j in range(3):
        a(f"s_add_u32 s13, s12, {1024*j}")
        a("s_mov_b32 m0, s13")
        a(f"buffer_load_dwordx4 v{6+j}, s[44:47], 0 offen lds")
    for j in range(3):
        a(f"s_add_u32 s13, s12, {24576+1024*j}")
        a("s_mov_b32 m0, s13")
        a(f"buffer_load_dwordx4 v{6+j}, s[48:51], 0 offen lds")
    a("s_and_b32 s14, s3, 1")
    a("s_cmp_eq_u32 s14, 1")
    a("s_cselect_b64 s[56:57], -1, 0")
    a(f"v_mov_b32 v9, {NEG}")
    a("v_lshlrev_b32 v10, 2, v4")
    for r in range(4):
        a(f"v_add_u32 v11, {r}, v10")
        a("v_cmp_gt_u32 vcc, v11, v3")
        a(f"v_cndmask_b32 v32, v9, 0, vcc")
        a(f"v_cndmask_b32 v33, 0, v9, vcc")
        a(f"v_cndmask_b32 v{16+r}, v32, v9, s[56:57]")
        a(f"v_cndmask_b32 v{20+r}, 0, v32, s[56:57]")
        a(f"v_cndmask_b32 v{24+r}, v33, 0, s[56:57]")
        a(f"v_cndmask_b32 v{28+r}, v9, v33, s[56:57]")
    a("s_and_b32 s15, s3, 6")
    a("s_lshl_b32 s58, s15, 10")
    a("v_add_u32 v10, s58, v5")
    a(f"s_mov_b32 s59, {f32hex(CSCALE)}")
    a("s_waitcnt vmcnt(0)")
    a("s_barrier")
    KV = 36
    S = 108
    P = 180
    for j in range(18):
        a(f"ds_read_b128 {vr(KV+4*j)}, v10 offset:{1024*j}")
    for j in range(18):
        if j >= 3:
            a(f"s_waitcnt lgkmcnt({17-j})")
        elif j == 0:
            a("s_waitcnt lgkmcnt(15)")
            a("s_waitcnt lgkmcnt(15)")
        c = {0: vr(16), 1: vr(20), 16: vr(24), 17: vr(28)}.get(j, "0")
        a(f"v_mfma_f32_16x16x32_bf16 {vr(S+4*j)}, {vr(KV+4*j)}, {vr(QR)}, {c}")
    for j in range(18):
        a(f"ds_read_b128 {vr(KV+4*j)}, v10 offset:{24576+1024*j}")
    a("s_cmp_ge_u32 s4, 2")
    a.branch(f"s_cbranch_scc1 {name}_noearly")
    a("s_sub_u32 s60, 16, s7")
    a("s_sub_u32 s60, s60, s15")
    for j in range(16):
        a(f"s_cmp_gt_i32 s60, {j}")
        a(f"s_cselect_b32 s61, {NEG}, 0")
        for r in range(4):
            a(f"v_add_f32 v{S+4*j+r}, s61, v{S+4*j+r}")
    a.label(f"{name}_noearly")
    M = 32
    a(f"v_max3_f32 v{M}, v{S}, v{S+1}, v{S+2}")
    a(f"v_max3_f32 v{M+1}, v{S+3}, v{S+4}, v{S+5}")
    for k in range(6, 72, 4):
        a(f"v_max3_f32 v{M}, v{M}, v{S+k}, v{S+k+1}")
        if k + 3 < 72:
            a(f"v_max3_f32 v{M+1}, v{M+1}, v{S+k+2}, v{S+k+3}")
    a(f"v_max_f32 v{M}, v{M}, v{M+1}")
    xlane_max(a, M, M + 1)
    a(f"v_mul_f32 v{M}, -v{M}, s59")
    OA = 16
    for G in range(9):
        for k in range(8):
            a(f"v_fma_f32 v{S+8*G+k}, v{S+8*G+k}, s59, v{M}")
        for k in range(8):
            a(f"v_exp_f32 v{S+8*G+k}, v{S+8*G+k}")
        for q in range(4):
            a(f"v_cvt_pk_bf16_f32 v{P+4*G+q}, v{S+8*G+2*q}, v{S+8*G+2*q+1}")
        if G == 0:
            a("s_waitcnt lgkmcnt(0)")
        for dt in range(2):
            c = "0" if G == 0 else vr(OA + 4 * dt)
            a(f"v_mfma_f32_16x16x32_bf16 {vr(OA+4*dt)}, {vr(KV+8*G+4*dt)}, {vr(P+4*G)}, {c}")
    a("v_cmp_eq_u32 vcc, 3, v4")
    a(f"v_cndmask_b32 v{M}, 0, v{OA+4}, vcc")
    xlane_sum(a, M, M + 1)
    a(f"v_rcp_f32 v{M}, v{M}")
    for k in range(8):
        a(f"v_mul_f32 v{OA+k}, v{OA+k}, v{M}")
    for q in range(4):
        a(f"v_cvt_pk_bf16_f32 v{24+q}, v{OA+2*q}, v{OA+2*q+1}")
    a("s_lshl_b32 s60, s10, 4")
    a("s_add_u32 s60, s60, s5")
    a("s_lshl_b32 s60, s60, 10")
    a(f"buffer_store_dwordx4 {vr(24)}, v5, s[52:55], s60 offen")
    a.label(f"{name}_end")
    a("s_endpgm")
    return a


K4_LDS = 131072


def gen_k4(name, layer):
    a = Asm()
    a("s_cmp_ge_u32 s2, 224")
    a.branch(f"s_cbranch_scc1 {name}_end")
    load_ptrs(a)
    a("v_lshrrev_b32 v1, 6, v0")
    a("v_and_b32 v2, 63, v0")
    a("v_readfirstlane_b32 s3, v1")
    a("v_and_b32 v3, 15, v2")
    a("v_lshrrev_b32 v4, 4, v2")
    a("v_lshlrev_b32 v5, 4, v2")
    a("s_and_b32 s4, s2, 7")
    a("s_lshr_b32 s5, s2, 3")
    a("s_mul_i32 s6, s5, 9363")
    a("s_lshr_b32 s6, s6, 16")
    a("s_mul_i32 s7, s6, 7")
    a("s_sub_u32 s5, s5, s7")
    a("s_lshl_b32 s4, s4, 2")
    a("s_add_u32 s4, s4, s6")
    a("s_lshr_b32 s6, s3, 1")
    a("s_and_b32 s7, s3, 1")
    a("s_lshl_b32 s8, s4, 6")
    a("s_lshl_b32 s9, s6, 5")
    a("s_add_u32 s8, s8, s9")
    a("v_add_u32 v6, s8, v3")
    a("s_movk_i32 s9, 896")
    a("v_mul_lo_u32 v6, v6, s9")
    a("s_lshl_b32 s10, s5, 7")
    a("s_lshl_b32 s11, s7, 6")
    a("s_add_u32 s10, s10, s11")
    a("v_lshl_add_u32 v6, v4, 4, v6")
    a("v_add_u32 v6, s10, v6")
    a("v_add_u32 v7, 14336, v6")
    a("s_waitcnt lgkmcnt(0)")
    srd(a, 40, P_WS, X1_OFF if layer == 0 else X3_OFF, size=XBYTES)
    if layer == 0:
        srd(a, 44, P_WS, X2_OFF, size=XBYTES)
    else:
        srd(a, 44, P_OUT, size=XBYTES)
    srd(a, 48, P_WS, OF_OFF, size=2 * MB)
    srd(a, 52, P_WS, WO_OFF, size=28 * 16384)
    a("buffer_load_dwordx4 v[8:11], v6, s[40:43], 0 offen")
    a("buffer_load_dwordx4 v[12:15], v7, s[40:43], 0 offen")
    a("s_lshl_b32 s12, s4, 16")
    a("s_lshl_b32 s13, s3, 14")
    a("s_add_u32 s12, s12, s13")
    a("s_lshl_b32 s14, s5, 16")
    a("s_add_u32 s14, s14, s13")
    a("s_add_u32 s15, s13, 65536")
    for c in range(4):
        a(f"s_add_u32 s56, s13, {4096*c}")
        a(f"s_add_u32 s57, s12, {4096*c}")
        a("s_mov_b32 m0, s56")
        for k in range(4):
            a(f"buffer_load_dwordx4 v5, s[48:51], s57 offen offset:{1024*k} lds")
        a(f"s_add_u32 s56, s15, {4096*c}")
        a(f"s_add_u32 s57, s14, {4096*c}")
        a("s_mov_b32 m0, s56")
        for k in range(4):
            a(f"buffer_load_dwordx4 v5, s[52:55], s57 offen offset:{1024*k} lds")
    a("s_lshl_b32 s56, s6, 15")
    a("v_add_u32 v16, s56, v5")
    a("s_lshl_b32 s56, s7, 15")
    a("s_add_u32 s56, s56, 65536")
    a("v_add_u32 v17, s56, v5")
    ACC = 20
    FR = 40
    for c in range(4):
        a(f"s_waitcnt vmcnt({24-8*c})")
        a("s_barrier")
        for k in range(4):
            kk = 4 * c + k
            for x in range(2):
                a(f"ds_read_b128 {vr(FR+16*k+4*x)}, v16 offset:{16384*x+1024*kk}")
                a(f"ds_read_b128 {vr(FR+16*k+8+4*x)}, v17 offset:{16384*x+1024*kk}")
        for k in range(4):
            kk = 4 * c + k
            a(f"s_waitcnt lgkmcnt({12-4*k})")
            for x in range(2):
                for b in range(2):
                    d = vr(ACC + 8 * x + 4 * b)
                    cc = "0" if kk == 0 else d
                    a(f"v_mfma_f32_16x16x32_bf16 {d}, {vr(FR+16*k+8+4*b)}, {vr(FR+16*k+4*x)}, {cc}")
    for x in range(2):
        for q in range(4):
            lo, hi = ACC + 8 * x + 2 * q, ACC + 8 * x + 2 * q + 1
            round2(a, lo, hi, 40)
            unpack(a, 41, 42, 8 + 4 * x + q)
            a(f"v_add_f32 v{lo}, v{lo}, v41")
            a(f"v_add_f32 v{hi}, v{hi}, v42")
            a(f"v_cvt_pk_bf16_f32 v{44+4*x+q}, v{lo}, v{hi}")
        a(f"buffer_store_dwordx4 {vr(44+4*x)}, v{6+x}, s[44:47], 0 offen")
    a.label(f"{name}_end")
    a("s_endpgm")
    return a


def main():
    hdr = open("interleave_layers__ssm_conv_h3__sliding_block__prompt.s.ref").read().split("\n")
    hdr = [l for l in hdr if l.startswith(";") and "@launch" not in l and "Override launch" not in l and "grid=ceil" not in l]
    kernels = [
        ("k0_kernel", gen_k0(), 448, 256, 0),
        ("k1_kernel", gen_k1(), 224, 256, K1_LDS),
        ("k2_kernel", gen_k2("k2", 0), 256, 512, K2_LDS),
        ("k3_kernel", gen_k3(), 256, 512, K3_LDS),
        ("k4_kernel", gen_k4("k4", 0), 224, 256, K4_LDS),
        ("k5_kernel", gen_k2("k5", 1), 256, 512, K2_LDS),
        ("k7_kernel", gen_k4("k7", 1), 224, 256, K4_LDS),
    ]
    kd = {k[0]: k for k in kernels}
    order = ["k0_kernel", "k1_kernel", "k2_kernel", "k3_kernel", "k4_kernel", "k5_kernel", "k3_kernel", "k7_kernel"]
    out = "\n".join(hdr) + "\n"
    for n in order:
        _, _, g, b, l = kd[n]
        out += f"; @launch kernel={n} grid=({g},1,1) block=({b},1,1) lds={l}\n"
    out += '.amdgcn_target "amdgcn-amd-amdhsa--gfx950"\n.text\n'
    for n, a, *_ in kernels:
        out += kernel_header(n) + a.text()
    out += '.section .rodata,"a"\n'
    for n, a, *_ in kernels:
        out += kernel_desc(n, a.maxv + 1, a.maxa + 1, a.maxs + 1)
        print(n, "vgpr", a.maxv + 1, "agpr", a.maxa + 1, "sgpr", a.maxs + 1, file=sys.stderr)
    dst = sys.argv[1] if len(sys.argv) > 1 else "interleave_layers__ssm_conv_h3__sliding_block__prompt.s"
    open(dst, "w").write(out)


if __name__ == "__main__":
    main()
```

```python
import sys, math
from asmlib import Asm, kernel_header, kernel_desc

MB = 1 << 20
U_OFF, GU = 0, 8448
YT_OFF = 4 * MB
WQ_OFF = 6 * MB
WO_OFF = 8 * MB
QF_OFF = 10 * MB
KF_OFF = 12 * MB
VF_OFF = 14 * MB
OF_OFF = 16 * MB
X1_OFF = 18 * MB
X2_OFF = 20 * MB
X3_OFF = 22 * MB
XBYTES = 2048 * 896
NEG = "0xf149f2ca"

P_Q, P_K, P_V, P_SH, P_SK, P_SD, P_BX, P_WQKV, P_WO, P_OUT, P_DBG, P_WS = [16 + 2 * i for i in range(12)]


def load_ptrs(a):
    a("s_load_dwordx16 s[16:31], s[0:1], 0")
    a("s_load_dwordx8 s[32:39], s[0:1], 64")


def srd(a, d, p, off=0, size=0x7fffffff, soff=None):
    if off == 0 and soff is None:
        a(f"s_mov_b32 s{d}, s{p}")
        a(f"s_mov_b32 s{d+1}, s{p+1}")
    else:
        if off:
            a(f"s_add_u32 s{d}, s{p}, {off}")
            a(f"s_addc_u32 s{d+1}, s{p+1}, 0")
            if soff is not None:
                a(f"s_add_u32 s{d}, s{d}, s{soff}")
                a(f"s_addc_u32 s{d+1}, s{d+1}, 0")
        else:
            a(f"s_add_u32 s{d}, s{p}, s{soff}")
            a(f"s_addc_u32 s{d+1}, s{p+1}, 0")
    a(f"s_mov_b32 s{d+2}, {size}")
    a(f"s_mov_b32 s{d+3}, 0x00020000")


STAMPS = len(sys.argv) > 2 and sys.argv[2] == "stamps"
ST_OFF = 64 * MB


def stamp(a, i, real=False):
    if not STAMPS:
        return
    a(f"s_{'memrealtime' if real else 'memtime'} s[{80+2*i}:{81+2*i}]")
    a("s_waitcnt lgkmcnt(0)")


def stamp_flush(a, kidx, n):
    if not STAMPS:
        return
    a("s_waitcnt vmcnt(0)")
    stamp(a, n - 2)
    stamp(a, n - 1, real=True)
    srd(a, 96, P_WS, ST_OFF + kidx * 512 * 8 * 64, size=512 * 8 * 64)
    a("s_lshl_b32 s100, s2, 3")
    a("s_add_u32 s100, s100, s3")
    a("s_lshl_b32 s100, s100, 6")
    a("v_mov_b32 v1, 0")
    for i in range(n):
        a(f"v_mov_b32 v2, s{80+2*i}")
        a(f"buffer_store_dword v2, v1, s[96:99], s100 offen offset:{4*i}")


def vr(b, n=4):
    return f"v[{b}:{b+n-1}]"


def ar(b, n=4):
    return f"a[{b}:{b+n-1}]"


def unpack(a, lo, hi, src):
    a(f"v_lshlrev_b32 v{lo}, 16, v{src}")
    a(f"v_and_b32 v{hi}, 0xffff0000, v{src}")


def round2(a, x, y, tmp):
    a(f"v_cvt_pk_bf16_f32 v{tmp}, v{x}, v{y}")
    unpack(a, x, y, tmp)


def gen_k0():
    a = Asm()
    a("s_cmp_ge_u32 s2, 448")
    a.branch("s_cbranch_scc1 k0_end")
    load_ptrs(a)
    a("v_lshrrev_b32 v1, 6, v0")
    a("s_cmp_ge_u32 s2, 224")
    a.branch("s_cbranch_scc1 k0_pack")
    a("s_lshr_b32 s3, s2, 5")
    a("s_and_b32 s4, s2, 31")
    a("v_and_b32 v1, 31, v0")
    a("v_lshrrev_b32 v2, 5, v0")
    a("s_lshl_b32 s5, s4, 6")
    a("v_lshl_add_u32 v3, v2, 3, s5")
    a("s_lshl_b32 s6, s3, 7")
    a("v_lshl_add_u32 v4, v1, 2, s6")
    a("s_movk_i32 s7, 896")
    a("v_mad_u32_u24 v5, v3, s7, v4")
    a("v_subrev_u32 v6, 2688, v5")
    a("v_subrev_u32 v7, 1792, v5")
    a("v_subrev_u32 v8, 896, v5")
    a("v_add_u32 v9, 4480, v5")
    a("v_lshlrev_b32 v10, 2, v4")
    a("s_waitcnt lgkmcnt(0)")
    srd(a, 40, P_K, size=XBYTES)
    srd(a, 44, P_V, size=XBYTES)
    srd(a, 48, P_SH, size=448 * 8)
    srd(a, 52, P_WS, U_OFF, size=448 * GU)
    K0 = 16
    V0 = 28
    S0 = 36
    a(f"buffer_load_dwordx4 {vr(S0)}, v10, s[48:51], 0 offen")
    a(f"buffer_load_dword v{K0+0}, v6, s[40:43], 0 offen")
    a(f"buffer_load_dword v{K0+1}, v7, s[40:43], 0 offen")
    a(f"buffer_load_dword v{K0+2}, v8, s[40:43], 0 offen")
    for i in range(5):
        a(f"buffer_load_dword v{K0+3+i}, v5, s[40:43], 0 offen offset:{896*i}")
    for i in range(3):
        a(f"buffer_load_dword v{K0+8+i}, v9, s[40:43], 0 offen offset:{896*i}")
    for i in range(5):
        a(f"buffer_load_dword v{V0+i}, v5, s[44:47], 0 offen offset:{896*i}")
    for i in range(3):
        a(f"buffer_load_dword v{V0+5+i}, v9, s[44:47], 0 offen offset:{896*i}")
    a("v_lshrrev_b32 v11, 1, v4")
    a(f"s_movk_i32 s8, {GU}")
    a("v_mul_lo_u32 v11, v11, s8")
    a("v_lshlrev_b32 v12, 1, v3")
    a("v_sub_u32 v11, v11, v12")
    a("v_add_u32 v12, 8304, v11")
    a("v_add_u32 v13, 4136, v11")
    a("v_add_u32 v14, 4144, v11")
    a("v_add_u32 v15, 8232, v11")
    a("v_cmp_eq_u32 vcc, 2040, v3")
    a("v_cndmask_b32 v13, v13, v15, vcc")
    KF_ = 40
    WF = 64
    VF_ = 72
    a("s_waitcnt vmcnt(19)")
    unpack(a, WF + 0, WF + 1, S0 + 0)
    unpack(a, WF + 2, WF + 3, S0 + 1)
    unpack(a, WF + 4, WF + 5, S0 + 2)
    unpack(a, WF + 6, WF + 7, S0 + 3)
    a("s_waitcnt vmcnt(8)")
    for i in range(11):
        unpack(a, KF_ + i, KF_ + 11 + i, K0 + i)
    a("s_waitcnt vmcnt(0)")
    for i in range(8):
        unpack(a, VF_ + i, VF_ + 8 + i, V0 + i)
    R = 90
    T = 110
    for t in range(8):
        xa, xb = R + t, R + 8 + t
        for tt in range(4):
            pa, pb = (xa, xb) if tt == 0 else (T, T + 1)
            a(f"v_mul_f32 v{pa}, v{KF_+t+tt}, v{WF+3-tt}")
            a(f"v_mul_f32 v{pb}, v{KF_+11+t+tt}, v{WF+4+3-tt}")
            round2(a, pa, pb, T + 2)
            if tt:
                a(f"v_add_f32 v{xa}, v{xa}, v{pa}")
                a(f"v_add_f32 v{xb}, v{xb}, v{pb}")
                round2(a, xa, xb, T + 2)
        a(f"v_mul_f32 v{xa}, v{xa}, v{VF_+t}")
        a(f"v_mul_f32 v{xb}, v{xb}, v{VF_+8+t}")
    O = 112
    for c in range(2):
        for j in range(4):
            a(f"v_cvt_pk_bf16_f32 v{O+4*c+j}, v{R+8*c+7-2*j}, v{R+8*c+6-2*j}")
    for c in range(2):
        a(f"v_cndmask_b32 v{120+2*c}, v{O+4*c}, 0, vcc")
        a(f"v_cndmask_b32 v{121+2*c}, v{O+4*c+1}, 0, vcc")
    a(f"s_movk_i32 s9, {GU}")
    a(f"buffer_store_dwordx4 {vr(O)}, v12, s[52:55], 0 offen")
    a(f"buffer_store_dwordx4 {vr(O+4)}, v12, s[52:55], s9 offen")
    a(f"buffer_store_dwordx2 v[120:121], v13, s[52:55], 0 offen")
    a(f"buffer_store_dwordx2 v[122:123], v13, s[52:55], s9 offen")
    a(f"buffer_store_dwordx2 v[{O+2}:{O+3}], v14, s[52:55], 0 offen")
    a(f"buffer_store_dwordx2 v[{O+6}:{O+7}], v14, s[52:55], s9 offen")
    a("s_endpgm")
    a.label("k0_pack")
    a("v_readfirstlane_b32 s3, v1")
    a("v_and_b32 v2, 15, v0")
    a("v_bfe_u32 v3, v0, 4, 2")
    a("v_and_b32 v8, 63, v0")
    a("v_lshlrev_b32 v8, 4, v8")
    a("v_lshrrev_b32 v4, 2, v2")
    a("v_and_b32 v5, 3, v2")
    a("v_lshl_add_u32 v4, v4, 3, v5")
    a("s_cmp_ge_u32 s2, 392")
    a.branch("s_cbranch_scc1 k0_packo")
    a("s_sub_u32 s4, s2, 224")
    a("s_lshl_b32 s4, s4, 2")
    a("s_add_u32 s4, s4, s3")
    a("s_mul_i32 s5, s4, 9363")
    a("s_lshr_b32 s5, s5, 16")
    a("s_mul_i32 s6, s5, 7")
    a("s_sub_u32 s6, s4, s6")
    a("s_mul_i32 s7, s5, 5462")
    a("s_lshr_b32 s7, s7, 16")
    a("s_mul_i32 s8, s7, 12")
    a("s_sub_u32 s8, s5, s8")
    a("s_mul_i32 s9, s8, 21846")
    a("s_lshr_b32 s9, s9, 16")
    a("s_mul_i32 s10, s9, 3")
    a("s_sub_u32 s10, s8, s10")
    a("s_lshl_b32 s11, s7, 2")
    a("s_add_u32 s11, s11, s9")
    a("s_mul_i32 s11, s11, 28")
    a("s_lshl_b32 s12, s7, 1")
    a("s_lshr_b32 s13, s9, 1")
    a("s_add_u32 s12, s12, s13")
    a("s_mul_i32 s12, s12, 28")
    a("s_add_u32 s12, s12, 896")
    a("s_and_b32 s13, s9, 1")
    a("s_cmp_lt_u32 s10, 2")
    a("s_cselect_b32 s11, s11, s12")
    a("s_cselect_b32 s13, s10, s13")
    a("s_lshl_b32 s13, s13, 2")
    a("v_add_u32 v4, s13, v4")
    a("v_add_u32 v5, s11, v4")
    a("v_lshlrev_b32 v5, 1, v5")
    a("s_movk_i32 s14, 21504")
    a("v_mad_u32_u24 v5, v3, s14, v5")
    a("v_mov_b32 v6, 0x80000000")
    a("v_cmp_gt_u32 vcc, 28, v4")
    a("v_cndmask_b32 v5, v6, v5, vcc")
    a("s_mul_i32 s15, s6, 172032")
    a("s_waitcnt lgkmcnt(0)")
    srd(a, 40, P_WQKV, size=448 * 2688)
    srd(a, 44, P_WS, WQ_OFF, size=96 * 14 * 1024)
    for kk in range(2):
        for e in range(8):
            a(f"s_add_u32 s{48+kk*8+e}, s15, {kk*86016+e*2688}")
    for kk in range(2):
        for e in range(8):
            a(f"buffer_load_ushort v{16+kk*8+e}, v5, s[40:43], s{48+kk*8+e} offen")
    a("s_mul_i32 s4, s5, 14336")
    a("s_lshl_b32 s6, s6, 11")
    a("s_add_u32 s4, s4, s6")
    for kk in range(2):
        a(f"s_waitcnt vmcnt({8-8*kk})")
        for j in range(4):
            a(f"v_lshl_or_b32 v{32+kk*4+j}, v{16+kk*8+2*j+1}, 16, v{16+kk*8+2*j}")
        a(f"buffer_store_dwordx4 {vr(32+kk*4)}, v8, s[44:47], s4 offen offset:{1024*kk}")
    a("s_endpgm")
    a.label("k0_packo")
    a("s_sub_u32 s4, s2, 392")
    a("s_lshl_b32 s4, s4, 2")
    a("s_add_u32 s4, s4, s3")
    a("s_lshr_b32 s5, s4, 3")
    a("s_and_b32 s6, s4, 7")
    a("s_lshr_b32 s7, s5, 1")
    a("s_lshl_b32 s7, s7, 5")
    a("s_and_b32 s8, s5, 1")
    a("s_lshl_b32 s8, s8, 2")
    a("s_add_u32 s7, s7, s8")
    a("v_add_u32 v5, s7, v4")
    a("v_lshlrev_b32 v5, 1, v5")
    a("s_movk_i32 s14, 7168")
    a("v_mad_u32_u24 v5, v3, s14, v5")
    a("v_mov_b32 v6, 0x80000000")
    a("v_cmp_gt_u32 vcc, 3, v3")
    a("v_cndmask_b32 v7, v6, v5, vcc")
    a("s_mul_i32 s15, s6, 50176")
    a("s_waitcnt lgkmcnt(0)")
    srd(a, 40, P_WO, size=448 * 896)
    srd(a, 44, P_WS, WO_OFF, size=28 * 16 * 1024)
    for kk in range(2):
        for e in range(8):
            a(f"s_add_u32 s{48+kk*8+e}, s15, {kk*25088+e*896}")
    for kk in range(2):
        for e in range(8):
            a(f"buffer_load_ushort v{16+kk*8+e}, v{5 if e < 4 else 7}, s[40:43], s{48+kk*8+e} offen")
    a("s_lshl_b32 s4, s5, 14")
    a("s_lshl_b32 s6, s6, 11")
    a("s_add_u32 s4, s4, s6")
    for kk in range(2):
        a(f"s_waitcnt vmcnt({8-8*kk})")
        for j in range(4):
            a(f"v_lshl_or_b32 v{32+kk*4+j}, v{16+kk*8+2*j+1}, 16, v{16+kk*8+2*j}")
        a(f"buffer_store_dwordx4 {vr(32+kk*4)}, v8, s[44:47], s4 offen offset:{1024*kk}")
    a.label("k0_end")
    a("s_endpgm")
    return a


CSA = 4160
CSB = 4640
BOFF = 4 * CSA
CHS = 4 * CSA + 2 * CSB
K1_RED = 2 * CHS
K1_LDS = K1_RED + 16384


def gen_k1():
    a = Asm()
    a("s_cmp_ge_u32 s2, 224")
    a.branch("s_cbranch_scc1 k1_end")
    stamp(a, 0, True); stamp(a, 1)
    load_ptrs(a)
    a("v_lshrrev_b32 v1, 6, v0")
    a("v_and_b32 v2, 63, v0")
    a("v_readfirstlane_b32 s3, v1")
    a("v_lshlrev_b32 v3, 4, v0")
    a("v_lshlrev_b32 v4, 4, v2")
    a("v_subrev_u32 v5, 64, v3")
    a("v_subrev_u32 v6, 48, v3")
    a("s_lshl_b32 s4, s2, 13")
    a(f"s_mul_i32 s5, s2, {2*GU}")
    a("s_lshl_b32 s6, s2, 2")
    a("s_waitcnt lgkmcnt(0)")
    a(f"s_add_u32 s8, s{P_SD}, s6")
    a(f"s_addc_u32 s9, s{P_SD+1}, 0")
    a("s_load_dword s7, s[8:9], 0")
    srd(a, 40, P_SK, size=4096, soff=4)
    a("s_add_u32 s44, s40, 4096")
    a("s_addc_u32 s45, s41, 0")
    a("s_mov_b32 s46, 4096")
    a("s_mov_b32 s47, 0x00020000")
    srd(a, 48, P_WS, U_OFF, size=2 * GU, soff=5)
    srd(a, 52, P_WS, YT_OFF, size=8192, soff=4)
    a("buffer_load_dwordx4 v[16:19], v5, s[40:43], 0 offen")
    a("buffer_load_dwordx4 v[20:23], v6, s[40:43], 0 offen")
    a("buffer_load_dwordx4 v[24:27], v5, s[44:47], 0 offen")
    a("buffer_load_dwordx4 v[28:31], v6, s[44:47], 0 offen")
    a("v_add_u32 v7, 4096, v5")
    a("v_add_u32 v8, 4096, v6")
    a("buffer_load_dwordx4 v[32:35], v7, s[40:43], 0 offen")
    a("buffer_load_dwordx4 v[36:39], v8, s[40:43], 0 offen")
    a("buffer_load_dwordx4 v[40:43], v7, s[44:47], 0 offen")
    a("buffer_load_dwordx4 v[44:47], v8, s[44:47], 0 offen")
    a("s_and_b32 s10, s3, 1")
    a("s_lshr_b32 s11, s3, 1")
    a(f"s_mul_i32 s12, s10, {GU}")
    a("s_mul_i32 s13, s11, 4160")
    a("s_add_u32 s12, s12, s13")
    a("s_add_u32 s12, s12, 64")
    a(f"s_mul_i32 s14, s10, {CHS}")
    a(f"s_mul_i32 s15, s11, {CSB}")
    a("s_add_u32 s15, s15, s14")
    a(f"s_add_u32 s15, s15, {BOFF}")
    a("s_mov_b32 m0, s15")
    for i in range(4):
        a(f"buffer_load_dwordx4 v4, s[48:51], s12 offen offset:{1024*i} lds")
    a("v_mov_b32 v48, 0")
    a("v_mov_b32 v49, 0")
    a("v_mov_b32 v50, 0")
    a("v_mov_b32 v51, 0")
    a("v_add_u32 v9, s15, v4")
    a("v_cmp_gt_u32 vcc, 28, v2")
    a("s_and_saveexec_b64 s[56:57], vcc")
    a("ds_write_b128 v9, v[48:51] offset:4096")
    a("s_mov_b64 exec, s[56:57]")
    a("v_and_b32 v10, 15, v2")
    a("v_lshrrev_b32 v11, 4, v2")
    a("v_and_b32 v12, 3, v10")
    a(f"s_movk_i32 s58, {CSA}")
    a("v_mul_lo_u32 v12, v12, s58")
    a("v_lshrrev_b32 v13, 2, v10")
    a("v_add_u32 v13, v13, v11")
    a("v_lshl_add_u32 v12, v13, 4, v12")
    a("s_lshl_b32 s59, s11, 8")
    a("s_add_u32 s59, s59, s14")
    a("v_add_u32 v12, s59, v12")
    a("v_and_b32 v13, 1, v10")
    a(f"s_movk_i32 s58, {CSB}")
    a("v_mul_lo_u32 v13, v13, s58")
    a("v_lshrrev_b32 v14, 1, v10")
    a("v_lshlrev_b32 v14, 6, v14")
    a("v_sub_u32 v13, v13, v14")
    a("v_lshl_add_u32 v13, v11, 4, v13")
    a(f"s_add_u32 s59, s59, {BOFF+448}")
    a("v_add_u32 v13, s59, v13")

    def build_copies(D, addr, chb, extra_off):
        T = 52
        a(f"v_alignbit_b32 v{T+0}, v{D+3}, v{D+2}, 16")
        a(f"v_alignbit_b32 v{T+1}, v{D+4}, v{D+3}, 16")
        a(f"v_alignbit_b32 v{T+2}, v{D+5}, v{D+4}, 16")
        a(f"v_alignbit_b32 v{T+3}, v{D+6}, v{D+5}, 16")
        a(f"v_mov_b32 v{T+4}, v{T+1}")
        a(f"v_mov_b32 v{T+5}, v{T+2}")
        a(f"v_mov_b32 v{T+6}, v{T+3}")
        a(f"v_alignbit_b32 v{T+7}, v{D+7}, v{D+6}, 16")
        a(f"v_mov_b32 v{T+8}, v{D+3}")
        a(f"v_mov_b32 v{T+9}, v{D+4}")
        a(f"v_mov_b32 v{T+10}, v{D+5}")
        a(f"v_mov_b32 v{T+11}, v{D+6}")
        a(f"ds_write_b128 v{addr}, {vr(T)} offset:{chb+0*CSA+extra_off}")
        a(f"ds_write_b128 v{addr}, {vr(T+8)} offset:{chb+1*CSA+extra_off}")
        a(f"ds_write_b128 v{addr}, {vr(T+4)} offset:{chb+2*CSA+extra_off}")
        a(f"ds_write_b128 v{addr}, {vr(D+4)} offset:{chb+3*CSA+extra_off}")

    a("s_waitcnt vmcnt(10)")
    build_copies(16, 3, 0, 0)
    a("s_waitcnt vmcnt(8)")
    build_copies(24, 3, CHS, 0)
    a("s_waitcnt vmcnt(4)")
    a("v_cmp_gt_u32 vcc, 3, v0")
    a("s_and_saveexec_b64 s[56:57], vcc")
    build_copies(32, 3, 0, 4096)
    build_copies(40, 3, CHS, 4096)
    a("s_mov_b64 exec, s[56:57]")
    a("s_waitcnt vmcnt(0) lgkmcnt(0)")
    stamp(a, 2)
    a("s_barrier")
    stamp(a, 3)
    ACC = 16
    FA = [64, 128]
    FB = [96, 160]

    def reads(r, buf):
        for i in range(8):
            a(f"ds_read_b128 {vr(FA[buf]+4*i)}, v12 offset:{64*r+512*i}")
            a(f"ds_read_b128 {vr(FB[buf]+4*i)}, v13 offset:{64*r+512*(7-i)}")

    reads(0, 0)
    for r in range(4):
        buf = r & 1
        if r < 3:
            reads(r + 1, buf ^ 1)
            a("s_waitcnt lgkmcnt(15)")
        else:
            a("s_waitcnt lgkmcnt(0)")
        for aa in range(8):
            for n in range(aa, 8):
                c = "0" if (r == 0 and aa == 0) else vr(ACC + 4 * n)
                a(f"v_mfma_f32_16x16x32_bf16 {vr(ACC+4*n)}, {vr(FA[buf]+4*aa)}, {vr(FB[buf]+4*(n-aa))}, {c}")
    stamp(a, 4)
    a("s_lshl_b32 s58, s3, 12")
    a(f"s_add_u32 s58, s58, {K1_RED}")
    a("v_add_u32 v5, s58, v4")
    a("s_xor_b32 s59, s3, 2")
    a("s_lshl_b32 s59, s59, 12")
    a(f"s_add_u32 s59, s59, {K1_RED}")
    a("v_add_u32 v6, s59, v4")
    a("v_lshrrev_b32 v7, 1, v10")
    a("v_lshlrev_b32 v7, 5, v7")
    a("v_lshl_add_u32 v7, v11, 3, v7")
    a("v_and_b32 v8, 1, v10")
    a("v_lshl_add_u32 v7, v8, 2, v7")
    a("s_lshl_b32 s60, s11, 10")
    a("v_add_u32 v7, s60, v7")
    a("v_lshlrev_b32 v8, 1, v7")
    a(f"s_add_u32 s61, s14, {BOFF+CSB+4088-1536}")
    a("v_sub_u32 v9, s61, v8")
    a("s_lshl_b32 s62, s10, 12")
    a("v_add_u32 v8, s62, v8")
    a("s_lshl_b32 s63, s7, 16")
    a("s_and_b32 s64, s7, 0xffff0000")
    a("s_cmp_eq_u32 s10, 0")
    a("s_cselect_b32 s63, s63, s64")
    a("s_cmp_eq_u32 s11, 0")
    a.branch("s_cbranch_scc1 k1_r0")
    for variant in (1, 0):
        if variant == 0:
            a.label("k1_r0")
        keep = ACC + 16 * variant
        send = ACC + 16 * (1 - variant)
        for j in range(4):
            a(f"ds_write_b128 v5, {vr(send+4*j)} offset:{1024*j}")
        for j in range(4):
            a(f"ds_read_b64 v[{96+2*j}:{97+2*j}], v9 offset:{512*(3-j)}")
        a("s_waitcnt lgkmcnt(0)")
        a("s_barrier")
        for j in range(4):
            a(f"ds_read_b128 {vr(64+4*j)}, v6 offset:{1024*j}")
        for j in range(4):
            unpack(a, 107, 106, 96 + 2 * j)
            unpack(a, 105, 104, 97 + 2 * j)
            for e in range(4):
                a(f"v_mul_f32 v{104+e}, s63, v{104+e}")
            round2(a, 104, 105, 108)
            round2(a, 106, 107, 108)
            a(f"s_waitcnt lgkmcnt({3-j})")
            for e in range(4):
                a(f"v_add_f32 v{keep+4*j+e}, v{keep+4*j+e}, v{64+4*j+e}")
            round2(a, keep + 4 * j, keep + 4 * j + 1, 108)
            round2(a, keep + 4 * j + 2, keep + 4 * j + 3, 108)
            for e in range(4):
                a(f"v_add_f32 v{keep+4*j+e}, v{keep+4*j+e}, v{104+e}")
            a(f"v_cvt_pk_bf16_f32 v{110+2*j}, v{keep+4*j}, v{keep+4*j+1}")
            a(f"v_cvt_pk_bf16_f32 v{111+2*j}, v{keep+4*j+2}, v{keep+4*j+3}")
            a(f"buffer_store_dwordx2 v[{110+2*j}:{111+2*j}], v8, s[52:55], 0 offen offset:{512*j}")
        stamp_flush(a, 1, 7)
        a("s_endpgm")
    a.label("k1_end")
    a("s_endpgm")
    return a


YL, HL, STL = 0, 57344, 114688
K2_LDS = STL + 2048


def xlane_sum(a, x, t):
    a(f"v_mov_b32 v{t}, v{x}")
    a(f"v_permlane16_swap_b32 v{x}, v{t}")
    a(f"v_add_f32 v{x}, v{x}, v{t}")
    a(f"v_mov_b32 v{t}, v{x}")
    a(f"v_permlane32_swap_b32 v{x}, v{t}")
    a(f"v_add_f32 v{x}, v{x}, v{t}")


def xlane_max(a, x, t):
    a(f"v_mov_b32 v{t}, v{x}")
    a(f"v_permlane16_swap_b32 v{x}, v{t}")
    a(f"v_max_f32 v{x}, v{x}, v{t}")
    a(f"v_mov_b32 v{t}, v{x}")
    a(f"v_permlane32_swap_b32 v{x}, v{t}")
    a(f"v_max_f32 v{x}, v{x}, v{t}")


def ln_params(a, s1, s2, r, nmr, t):
    a(f"v_mul_f32 v{s1}, s70, v{s1}")
    a(f"v_mul_f32 v{s2}, s70, v{s2}")
    a(f"v_fma_f32 v{s2}, -v{s1}, v{s1}, v{s2}")
    a(f"v_max_f32 v{s2}, 0, v{s2}")
    round2(a, s1, s2, t)
    a(f"v_add_f32 v{s2}, s71, v{s2}")
    round2(a, s1, s2, t)
    a(f"v_sqrt_f32 v{s2}, v{s2}")
    round2(a, s1, s2, t)
    a(f"v_rcp_f32 v{r}, v{s2}")
    a(f"v_mul_f32 v{nmr}, -v{s1}, v{r}")


def gen_k2(name, layer):
    a = Asm()
    a("s_cmp_ge_u32 s2, 256")
    a.branch(f"s_cbranch_scc1 {name}_end")
    stamp(a, 0, True); stamp(a, 1)
    load_ptrs(a)
    a("v_lshrrev_b32 v1, 6, v0")
    a("v_and_b32 v2, 63, v0")
    a("v_readfirstlane_b32 s3, v1")
    a("v_and_b32 v3, 15, v2")
    a("v_lshrrev_b32 v4, 4, v2")
    a("v_lshlrev_b32 v5, 4, v2")
    a("s_and_b32 s4, s2, 7")
    a("s_lshr_b32 s5, s2, 3")
    a("s_lshl_b32 s4, s4, 2")
    a("s_lshr_b32 s6, s5, 3")
    a("s_add_u32 s4, s4, s6")
    a("s_and_b32 s5, s5, 7")
    a("s_lshr_b32 s6, s3, 1")
    a("s_and_b32 s7, s3, 1")
    a("s_mov_b32 s70, 0x3b124925")
    a("s_mov_b32 s71, 0x3727c5ac")
    a("s_mov_b32 s72, 0x3f803f80")
    a("s_lshl_b32 s8, s4, 6")
    a("s_lshl_b32 s9, s6, 4")
    a("s_add_u32 s8, s8, s9")
    a("v_add_u32 v6, s8, v3")
    a("s_movk_i32 s9, 896")
    a("v_mul_lo_u32 v6, v6, s9")
    a("s_mul_i32 s10, s7, 448")
    a("v_lshl_add_u32 v6, v4, 4, v6")
    a("v_add_u32 v6, s10, v6")
    a("v_bfe_u32 v7, v2, 1, 2")
    a("v_bfe_u32 v8, v2, 4, 1")
    a("v_xor_b32 v7, v7, v8")
    a("v_and_b32 v8, 1, v2")
    a("v_lshl_add_u32 v7, v7, 1, v8")
    a("s_lshl_b32 s11, s7, 2")
    a("v_xor_b32 v7, s11, v7")
    a("v_lshrrev_b32 v8, 3, v2")
    a("v_lshlrev_b32 v8, 12, v8")
    a("v_lshl_add_u32 v7, v7, 4, v8")
    a("s_lshl_b32 s11, s4, 7")
    a("v_add_u32 v7, s11, v7")
    a("v_xor_b32 v8, 64, v7")
    a("s_waitcnt lgkmcnt(0)")
    if layer == 0:
        srd(a, 40, P_Q, size=XBYTES)
    else:
        srd(a, 40, P_WS, X2_OFF, size=XBYTES)
    srd(a, 44, P_WS, YT_OFF, size=448 * 4096)
    srd(a, 48, P_WS, WQ_OFF, size=96 * 14336)
    srd(a, 52, P_WS, X1_OFF if layer == 0 else X3_OFF, size=XBYTES)
    srd(a, 56, P_WS, QF_OFF, size=6 * MB)
    X = 16
    for i in range(7):
        a(f"buffer_load_dwordx4 {vr(X+4*i)}, v6, s[40:43], 0 offen offset:{64*i}")
    a("s_mul_i32 s12, s3, 7")
    for j in range(7):
        a(f"s_add_u32 s13, s12, {j}")
        a("s_lshl_b32 s14, s13, 10")
        a("s_lshl_b32 s13, s13, 15")
        a("s_mov_b32 m0, s14")
        a(f"buffer_load_dwordx4 v{7 if j % 2 == 0 else 8}, s[44:47], s13 offen lds")
    a("s_lshl_b32 s13, s5, 2")
    a("s_add_u32 s13, s13, s6")
    a("s_mul_i32 s14, s13, 43008")
    a("s_mul_i32 s15, s7, 7168")
    a("s_add_u32 s14, s14, s15")
    a("s_add_u32 s15, s14, 14336")
    a("s_add_u32 s60, s14, 28672")
    for i in range(7):
        off = 1024 * i
        for tile, sreg in enumerate((14, 15, 60)):
            if off < 4096:
                a(f"buffer_load_dwordx4 {ar((i*3+tile)*4)}, v5, s[48:51], s{sreg} offen offset:{off}")
            else:
                a(f"buffer_load_dwordx4 {ar((i*3+tile)*4)}, v9, s[48:51], s{sreg} offen offset:{off-4096}")
        if i == 0:
            a("v_add_u32 v9, 4096, v5")
    a("v_bfe_u32 v10, v2, 2, 2")
    a("v_lshl_add_u32 v11, v4, 3, v10")
    a("v_lshlrev_b32 v11, 7, v11")
    a("v_lshrrev_b32 v10, 1, v10")
    a("v_and_b32 v12, 1, v4")
    a("v_lshl_or_b32 v10, v12, 1, v10")
    a("v_xor_b32 v10, s6, v10")
    a("v_lshl_add_u32 v11, v10, 5, v11")
    a("v_and_b32 v10, 3, v2")
    a("v_lshl_add_u32 v11, v10, 3, v11")
    a("s_mul_i32 s61, s7, 28672")
    a("v_add_u32 v11, s61, v11")
    a("s_lshl_b32 s61, s3, 7")
    a(f"s_add_u32 s61, s61, {STL}")
    a("v_lshl_add_u32 v12, v3, 3, s61")
    a("v_xor_b32 v13, 128, v12")
    S1, S2 = 44, 48
    for q in range(4):
        a(f"v_mov_b32 v{S1+q}, 0")
        a(f"v_mov_b32 v{S2+q}, 0")
    for i in range(7):
        a(f"s_waitcnt vmcnt({28+6-i})")
        for q in range(4):
            a(f"v_dot2c_f32_bf16 v{S1+q}, s72, v{X+4*i+q}")
            a(f"v_dot2c_f32_bf16 v{S2+q}, v{X+4*i+q}, v{X+4*i+q}")

    def finish_stats(stage):
        a(f"v_add_f32 v{S1}, v{S1}, v{S1+1}")
        a(f"v_add_f32 v{S1+2}, v{S1+2}, v{S1+3}")
        a(f"v_add_f32 v{S2}, v{S2}, v{S2+1}")
        a(f"v_add_f32 v{S2+2}, v{S2+2}, v{S2+3}")
        a(f"v_add_f32 v{S1}, v{S1}, v{S1+2}")
        a(f"v_add_f32 v{S1+1}, v{S2}, v{S2+2}")
        xlane_sum(a, S1, S1 + 2)
        xlane_sum(a, S1 + 1, S1 + 3)
        a(f"ds_write_b64 v12, v[{S1}:{S1+1}] offset:{1024*stage}")

    finish_stats(0)
    stamp(a, 2)
    a("s_waitcnt vmcnt(21) lgkmcnt(0)")
    a("s_barrier")
    stamp(a, 3)
    a(f"ds_read_b64 v[{S1+2}:{S1+3}], v13")
    Y = 52
    for i in range(7):
        a(f"ds_read_b64_tr_b16 v[{Y+4*i}:{Y+4*i+1}], v11 offset:{4096*i}")
        a(f"ds_read_b64_tr_b16 v[{Y+4*i+2}:{Y+4*i+3}], v11 offset:{4096*i+512}")
    a("s_waitcnt lgkmcnt(14)")
    a(f"v_add_f32 v{S1}, v{S1}, v{S1+2}")
    a(f"v_add_f32 v{S1+1}, v{S1+1}, v{S1+3}")
    R, NMR = S2, S2 + 1
    ln_params(a, S1, S1 + 1, R, NMR, S1 + 2)
    XF = 80
    T = 136
    for q in range(4):
        a(f"v_mov_b32 v{T+4+q}, 0")
        a(f"v_mov_b32 v{T+8+q}, 0")
    for i in range(7):
        a(f"s_waitcnt lgkmcnt({12-2*i})")
        for q in range(4):
            lo, hi = XF + 8 * i + 2 * q, XF + 8 * i + 2 * q + 1
            unpack(a, lo, hi, X + 4 * i + q)
            unpack(a, T, T + 1, Y + 4 * i + q)
            a(f"v_fma_f32 v{T+2}, v{lo}, v{R}, v{NMR}")
            a(f"v_fma_f32 v{T+3}, v{hi}, v{R}, v{NMR}")
            a(f"v_fma_f32 v{lo}, v{T+2}, v{T}, v{lo}")
            a(f"v_fma_f32 v{hi}, v{T+3}, v{T+1}, v{hi}")
            a(f"v_cvt_pk_bf16_f32 v{X+4*i+q}, v{lo}, v{hi}")
            a(f"v_dot2c_f32_bf16 v{T+4+q}, s72, v{X+4*i+q}")
            a(f"v_dot2c_f32_bf16 v{T+8+q}, v{X+4*i+q}, v{X+4*i+q}")
    for q in range(4):
        a(f"v_mov_b32 v{S1+q}, v{T+4+q}")
        a(f"v_mov_b32 v{S2+q}, v{T+8+q}")
    finish_stats(1)
    a("s_waitcnt lgkmcnt(0)")
    a("s_barrier")
    a(f"ds_read_b64 v[{S1+2}:{S1+3}], v13 offset:1024")
    a("s_mul_i32 s61, s6, 14336")
    a("s_mul_i32 s62, s7, 7168")
    a("s_add_u32 s61, s61, s62")
    a(f"s_add_u32 s61, s61, {HL}")
    a("v_add_u32 v14, s61, v5")
    a("s_waitcnt lgkmcnt(0)")
    a(f"v_add_f32 v{S1}, v{S1}, v{S1+2}")
    a(f"v_add_f32 v{S1+1}, v{S1+1}, v{S1+3}")
    ln_params(a, S1, S1 + 1, R, NMR, S1 + 2)
    for i in range(7):
        for q in range(4):
            lo, hi = XF + 8 * i + 2 * q, XF + 8 * i + 2 * q + 1
            a(f"v_fma_f32 v{lo}, v{lo}, v{R}, v{NMR}")
            a(f"v_fma_f32 v{hi}, v{hi}, v{R}, v{NMR}")
            a(f"v_cvt_pk_bf16_f32 v{Y+4*i+q}, v{lo}, v{hi}")
        a(f"ds_write_b128 v14, {vr(Y+4*i)} offset:{1024*i}")
    a("s_mul_i32 s61, s7, 35840")
    a(f"s_add_u32 s61, s61, {HL}")
    a("v_add_u32 v10, s61, v5")
    a("s_mul_i32 s61, s7, -21504")
    a(f"s_add_u32 s61, s61, {HL+28672}")
    a("v_add_u32 v11, s61, v5")
    a("s_waitcnt lgkmcnt(0)")
    a("s_barrier")
    stamp(a, 4)
    ACC = 80
    FR = [128, 144]

    def rd(i, buf):
        for s in range(4):
            a(f"ds_read_b128 {vr(FR[buf]+4*s)}, v{10 if s < 2 else 11} offset:{(s&1)*14336+1024*i}")

    rd(0, 0)
    for i in range(7):
        buf = i & 1
        if i < 6:
            rd(i + 1, buf ^ 1)
            a(f"s_waitcnt vmcnt({18-3*i}) lgkmcnt(4)")
        else:
            a("s_waitcnt vmcnt(0) lgkmcnt(0)")
        for s in range(4):
            for tile in range(3):
                d = vr(ACC + (s * 3 + tile) * 4)
                c = "0" if i == 0 else d
                w = ar((i * 3 + tile) * 4)
                h = vr(FR[buf] + 4 * s)
                if tile < 2:
                    a(f"v_mfma_f32_16x16x32_bf16 {d}, {w}, {h}, {c}")
                else:
                    a(f"v_mfma_f32_16x16x32_bf16 {d}, {h}, {w}, {c}")
    stamp(a, 5)
    a("s_mul_i32 s61, s3, 6144")
    a("v_add_u32 v10, s61, v5")
    a("s_xor_b32 s62, s3, 1")
    a("s_mul_i32 s62, s62, 6144")
    a("v_add_u32 v11, s62, v5")
    for j in range(6):
        a(f"ds_write_b128 v10, {vr(ACC+24+4*j)} offset:{1024*j}")
    a("s_cmp_lg_u32 s3, s5")
    a.branch(f"s_cbranch_scc1 {name}_nox")
    for i in range(7):
        a(f"buffer_store_dwordx4 {vr(X+4*i)}, v6, s[52:55], 0 offen offset:{64*i}")
    a.label(f"{name}_nox")
    a("s_lshl_b32 s61, s13, 17")
    a("s_lshl_b32 s62, s4, 12")
    a("s_add_u32 s61, s61, s62")
    a("s_lshl_b32 s62, s7, 11")
    a("s_add_u32 s61, s61, s62")
    a("s_lshl_b32 s62, s5, 1")
    a("s_lshr_b32 s63, s6, 1")
    a("s_add_u32 s62, s62, s63")
    a("s_lshl_b32 s62, s62, 6")
    a("s_lshl_b32 s63, s4, 1")
    a("s_add_u32 s62, s62, s63")
    a("s_add_u32 s62, s62, s7")
    a("s_lshl_b32 s62, s62, 1")
    a("s_and_b32 s63, s6, 1")
    a("s_add_u32 s62, s62, s63")
    a("s_lshl_b32 s62, s62, 10")
    a(f"s_add_u32 s62, s62, {VF_OFF-QF_OFF}")
    a("s_lshl_b32 s63, s63, 4")
    a("s_sub_u32 s63, 28, s63")
    a("v_cmp_eq_u32 vcc, s63, v3")
    a("v_mov_b32 v12, s72")
    a("s_waitcnt lgkmcnt(0)")
    a("s_barrier")
    for j in range(6):
        a(f"ds_read_b128 {vr(128+4*j)}, v11 offset:{1024*j}")
    for s in range(2):
        a(f"s_waitcnt lgkmcnt({3-3*s})")
        for k in range(12):
            a(f"v_add_f32 v{ACC+12*s+k}, v{ACC+12*s+k}, v{128+12*s+k}")
        for q in range(4):
            a(f"v_cvt_pk_bf16_f32 v{152+4*s+q}, v{ACC+12*s+2*q}, v{ACC+12*s+2*q+1}")
        a(f"buffer_store_dwordx4 {vr(152+4*s)}, v5, s[56:59], s61 offen offset:{1024*s}")
        for q in range(2):
            a(f"v_cvt_pk_bf16_f32 v{160+2*s+q}, v{ACC+12*s+8+2*q}, v{ACC+12*s+8+2*q+1}")
    for q in range(4):
        a(f"v_cndmask_b32 v{160+q}, v{160+q}, v12, vcc")
    a(f"buffer_store_dwordx4 {vr(160)}, v5, s[56:59], s62 offen")
    stamp_flush(a, 2 if layer == 0 else 5, 8)
    a.label(f"{name}_end")
    a("s_endpgm")
    return a


K3_LDS = 49152
CSCALE = 28 ** -0.5 * math.log2(math.e)


def f32hex(x):
    import struct
    return "0x%08x" % struct.unpack("<I", struct.pack("<f", x))[0]


def gen_k3():
    a = Asm()
    name = "k3"
    a("s_cmp_ge_u32 s2, 256")
    a.branch(f"s_cbranch_scc1 {name}_end")
    stamp(a, 0, True); stamp(a, 1)
    load_ptrs(a)
    a("v_lshrrev_b32 v1, 6, v0")
    a("v_and_b32 v2, 63, v0")
    a("v_readfirstlane_b32 s3, v1")
    a("v_and_b32 v3, 15, v2")
    a("v_lshrrev_b32 v4, 4, v2")
    a("v_lshlrev_b32 v5, 4, v2")
    a("s_and_b32 s4, s2, 7")
    a("s_lshr_b32 s5, s2, 3")
    a("s_lshl_b32 s4, s4, 1")
    a("s_lshr_b32 s6, s5, 4")
    a("s_add_u32 s4, s4, s6")
    a("s_and_b32 s5, s5, 15")
    a("s_lshl_b32 s6, s5, 17")
    a("s_lshl_b32 s7, s4, 3")
    a("s_mul_i32 s8, s3, 3")
    a("s_add_u32 s9, s7, s8")
    a("s_sub_u32 s9, s9, 16")
    a("s_lshl_b32 s9, s9, 10")
    a("v_add_u32 v6, s9, v5")
    a("v_add_u32 v7, 1024, v6")
    a("v_add_u32 v8, 2048, v6")
    a("s_add_u32 s10, s7, s3")
    a("s_lshl_b32 s11, s10, 10")
    a("s_waitcnt lgkmcnt(0)")
    srd(a, 40, P_WS, QF_OFF, size=131072, soff=6)
    srd(a, 44, P_WS, KF_OFF, size=131072, soff=6)
    srd(a, 48, P_WS, VF_OFF, size=131072, soff=6)
    srd(a, 52, P_WS, OF_OFF, size=2 * MB)
    QR = 12
    a(f"buffer_load_dwordx4 {vr(QR)}, v5, s[40:43], s11 offen")
    a("s_lshl_b32 s12, s8, 10")
    for j in range(3):
        a(f"s_add_u32 s13, s12, {1024*j}")
        a("s_mov_b32 m0, s13")
        a(f"buffer_load_dwordx4 v{6+j}, s[44:47], 0 offen lds")
    for j in range(3):
        a(f"s_add_u32 s13, s12, {24576+1024*j}")
        a("s_mov_b32 m0, s13")
        a(f"buffer_load_dwordx4 v{6+j}, s[48:51], 0 offen lds")
    a("s_and_b32 s14, s3, 1")
    a("s_cmp_eq_u32 s14, 1")
    a("s_cselect_b64 s[56:57], -1, 0")
    a(f"v_mov_b32 v9, {NEG}")
    a("v_lshlrev_b32 v10, 2, v4")
    for r in range(4):
        a(f"v_add_u32 v11, {r}, v10")
        a("v_cmp_gt_u32 vcc, v11, v3")
        a(f"v_cndmask_b32 v32, v9, 0, vcc")
        a(f"v_cndmask_b32 v33, 0, v9, vcc")
        a(f"v_cndmask_b32 v{16+r}, v32, v9, s[56:57]")
        a(f"v_cndmask_b32 v{20+r}, 0, v32, s[56:57]")
        a(f"v_cndmask_b32 v{24+r}, v33, 0, s[56:57]")
        a(f"v_cndmask_b32 v{28+r}, v9, v33, s[56:57]")
    a("s_and_b32 s15, s3, 6")
    a("s_lshl_b32 s58, s15, 10")
    a("v_add_u32 v10, s58, v5")
    a(f"s_mov_b32 s59, {f32hex(CSCALE)}")
    a("s_waitcnt vmcnt(0)")
    stamp(a, 2)
    a("s_barrier")
    stamp(a, 3)
    KV = 36
    S = 108
    P = 180
    for j in range(18):
        a(f"ds_read_b128 {vr(KV+4*j)}, v10 offset:{1024*j}")
    for j in range(18):
        if j >= 3:
            a(f"s_waitcnt lgkmcnt({17-j})")
        elif j == 0:
            a("s_waitcnt lgkmcnt(15)")
            a("s_waitcnt lgkmcnt(15)")
        c = {0: vr(16), 1: vr(20), 16: vr(24), 17: vr(28)}.get(j, "0")
        a(f"v_mfma_f32_16x16x32_bf16 {vr(S+4*j)}, {vr(KV+4*j)}, {vr(QR)}, {c}")
    for j in range(18):
        a(f"ds_read_b128 {vr(KV+4*j)}, v10 offset:{24576+1024*j}")
    a("s_cmp_ge_u32 s4, 2")
    a.branch(f"s_cbranch_scc1 {name}_noearly")
    a("s_sub_u32 s60, 16, s7")
    a("s_sub_u32 s60, s60, s15")
    for j in range(16):
        a(f"s_cmp_gt_i32 s60, {j}")
        a(f"s_cselect_b32 s61, {NEG}, 0")
        for r in range(4):
            a(f"v_add_f32 v{S+4*j+r}, s61, v{S+4*j+r}")
    a.label(f"{name}_noearly")
    M = 32
    a(f"v_max3_f32 v{M}, v{S}, v{S+1}, v{S+2}")
    a(f"v_max3_f32 v{M+1}, v{S+3}, v{S+4}, v{S+5}")
    for k in range(6, 72, 4):
        a(f"v_max3_f32 v{M}, v{M}, v{S+k}, v{S+k+1}")
        if k + 3 < 72:
            a(f"v_max3_f32 v{M+1}, v{M+1}, v{S+k+2}, v{S+k+3}")
    a(f"v_max_f32 v{M}, v{M}, v{M+1}")
    xlane_max(a, M, M + 1)
    a(f"v_mul_f32 v{M}, -v{M}, s59")
    OA = 16
    for G in range(9):
        for k in range(8):
            a(f"v_fma_f32 v{S+8*G+k}, v{S+8*G+k}, s59, v{M}")
        for k in range(8):
            a(f"v_exp_f32 v{S+8*G+k}, v{S+8*G+k}")
        for q in range(4):
            a(f"v_cvt_pk_bf16_f32 v{P+4*G+q}, v{S+8*G+2*q}, v{S+8*G+2*q+1}")
        if G == 0:
            a("s_waitcnt lgkmcnt(0)")
        for dt in range(2):
            c = "0" if G == 0 else vr(OA + 4 * dt)
            a(f"v_mfma_f32_16x16x32_bf16 {vr(OA+4*dt)}, {vr(KV+8*G+4*dt)}, {vr(P+4*G)}, {c}")
    stamp(a, 4)
    a("v_cmp_eq_u32 vcc, 3, v4")
    a(f"v_cndmask_b32 v{M}, 0, v{OA+4}, vcc")
    xlane_sum(a, M, M + 1)
    a(f"v_rcp_f32 v{M}, v{M}")
    for k in range(8):
        a(f"v_mul_f32 v{OA+k}, v{OA+k}, v{M}")
    for q in range(4):
        a(f"v_cvt_pk_bf16_f32 v{24+q}, v{OA+2*q}, v{OA+2*q+1}")
    a("s_lshl_b32 s60, s10, 4")
    a("s_add_u32 s60, s60, s5")
    a("s_lshl_b32 s60, s60, 10")
    a(f"buffer_store_dwordx4 {vr(24)}, v5, s[52:55], s60 offen")
    stamp_flush(a, 3, 7)
    a.label(f"{name}_end")
    a("s_endpgm")
    return a


K4_LDS = 131072


def gen_k4(name, layer):
    a = Asm()
    a("s_cmp_ge_u32 s2, 224")
    a.branch(f"s_cbranch_scc1 {name}_end")
    stamp(a, 0, True); stamp(a, 1)
    load_ptrs(a)
    a("v_lshrrev_b32 v1, 6, v0")
    a("v_and_b32 v2, 63, v0")
    a("v_readfirstlane_b32 s3, v1")
    a("v_and_b32 v3, 15, v2")
    a("v_lshrrev_b32 v4, 4, v2")
    a("v_lshlrev_b32 v5, 4, v2")
    a("s_and_b32 s4, s2, 7")
    a("s_lshr_b32 s5, s2, 3")
    a("s_mul_i32 s6, s5, 9363")
    a("s_lshr_b32 s6, s6, 16")
    a("s_mul_i32 s7, s6, 7")
    a("s_sub_u32 s5, s5, s7")
    a("s_lshl_b32 s4, s4, 2")
    a("s_add_u32 s4, s4, s6")
    a("s_lshr_b32 s6, s3, 1")
    a("s_and_b32 s7, s3, 1")
    a("s_lshl_b32 s8, s4, 6")
    a("s_lshl_b32 s9, s6, 5")
    a("s_add_u32 s8, s8, s9")
    a("v_add_u32 v6, s8, v3")
    a("s_movk_i32 s9, 896")
    a("v_mul_lo_u32 v6, v6, s9")
    a("s_lshl_b32 s10, s5, 7")
    a("s_lshl_b32 s11, s7, 6")
    a("s_add_u32 s10, s10, s11")
    a("v_lshl_add_u32 v6, v4, 4, v6")
    a("v_add_u32 v6, s10, v6")
    a("v_add_u32 v7, 14336, v6")
    a("s_waitcnt lgkmcnt(0)")
    srd(a, 40, P_WS, X1_OFF if layer == 0 else X3_OFF, size=XBYTES)
    if layer == 0:
        srd(a, 44, P_WS, X2_OFF, size=XBYTES)
    else:
        srd(a, 44, P_OUT, size=XBYTES)
    srd(a, 48, P_WS, OF_OFF, size=2 * MB)
    srd(a, 52, P_WS, WO_OFF, size=28 * 16384)
    a("buffer_load_dwordx4 v[8:11], v6, s[40:43], 0 offen")
    a("buffer_load_dwordx4 v[12:15], v7, s[40:43], 0 offen")
    a("s_lshl_b32 s12, s4, 16")
    a("s_lshl_b32 s13, s3, 14")
    a("s_add_u32 s12, s12, s13")
    a("s_lshl_b32 s14, s5, 16")
    a("s_add_u32 s14, s14, s13")
    a("s_add_u32 s15, s13, 65536")
    for c in range(4):
        a(f"s_add_u32 s56, s13, {4096*c}")
        a(f"s_add_u32 s57, s12, {4096*c}")
        a("s_mov_b32 m0, s56")
        for k in range(4):
            a(f"buffer_load_dwordx4 v5, s[48:51], s57 offen offset:{1024*k} lds")
        a(f"s_add_u32 s56, s15, {4096*c}")
        a(f"s_add_u32 s57, s14, {4096*c}")
        a("s_mov_b32 m0, s56")
        for k in range(4):
            a(f"buffer_load_dwordx4 v5, s[52:55], s57 offen offset:{1024*k} lds")
    a("s_lshl_b32 s56, s6, 15")
    a("v_add_u32 v16, s56, v5")
    a("s_lshl_b32 s56, s7, 15")
    a("s_add_u32 s56, s56, 65536")
    a("v_add_u32 v17, s56, v5")
    ACC = 20
    FR = 40
    for c in range(4):
        a(f"s_waitcnt vmcnt({24-8*c})")
        a("s_barrier")
        stamp(a, 2 + c)
        for k in range(4):
            kk = 4 * c + k
            for x in range(2):
                a(f"ds_read_b128 {vr(FR+16*k+4*x)}, v16 offset:{16384*x+1024*kk}")
                a(f"ds_read_b128 {vr(FR+16*k+8+4*x)}, v17 offset:{16384*x+1024*kk}")
        for k in range(4):
            kk = 4 * c + k
            a(f"s_waitcnt lgkmcnt({12-4*k})")
            for x in range(2):
                for b in range(2):
                    d = vr(ACC + 8 * x + 4 * b)
                    cc = "0" if kk == 0 else d
                    a(f"v_mfma_f32_16x16x32_bf16 {d}, {vr(FR+16*k+8+4*b)}, {vr(FR+16*k+4*x)}, {cc}")
    for x in range(2):
        for q in range(4):
            lo, hi = ACC + 8 * x + 2 * q, ACC + 8 * x + 2 * q + 1
            round2(a, lo, hi, 40)
            unpack(a, 41, 42, 8 + 4 * x + q)
            a(f"v_add_f32 v{lo}, v{lo}, v41")
            a(f"v_add_f32 v{hi}, v{hi}, v42")
            a(f"v_cvt_pk_bf16_f32 v{44+4*x+q}, v{lo}, v{hi}")
        a(f"buffer_store_dwordx4 {vr(44+4*x)}, v{6+x}, s[44:47], 0 offen")
    stamp_flush(a, 4 if layer == 0 else 7, 8)
    a.label(f"{name}_end")
    a("s_endpgm")
    return a


def main():
    hdr = open("interleave_layers__ssm_conv_h3__sliding_block__prompt.s.ref").read().split("\n")
    hdr = [l for l in hdr if l.startswith(";") and "@launch" not in l and "Override launch" not in l and "grid=ceil" not in l]
    kernels = [
        ("k0_kernel", gen_k0(), 448, 256, 0),
        ("k1_kernel", gen_k1(), 224, 256, K1_LDS),
        ("k2_kernel", gen_k2("k2", 0), 256, 512, K2_LDS),
        ("k3_kernel", gen_k3(), 256, 512, K3_LDS),
        ("k4_kernel", gen_k4("k4", 0), 224, 256, K4_LDS),
        ("k5_kernel", gen_k2("k5", 1), 256, 512, K2_LDS),
        ("k7_kernel", gen_k4("k7", 1), 224, 256, K4_LDS),
    ]
    kd = {k[0]: k for k in kernels}
    order = ["k0_kernel", "k1_kernel", "k2_kernel", "k3_kernel", "k4_kernel", "k5_kernel", "k3_kernel", "k7_kernel"]
    out = "\n".join(hdr) + "\n"
    for n in order:
        _, _, g, b, l = kd[n]
        out += f"; @launch kernel={n} grid=({g},1,1) block=({b},1,1) lds={l}\n"
    out += '.amdgcn_target "amdgcn-amd-amdhsa--gfx950"\n.text\n'
    for n, a, *_ in kernels:
        out += kernel_header(n) + a.text()
    out += '.section .rodata,"a"\n'
    for n, a, *_ in kernels:
        out += kernel_desc(n, a.maxv + 1, a.maxa + 1, a.maxs + 1)
        print(n, "vgpr", a.maxv + 1, "agpr", a.maxa + 1, "sgpr", a.maxs + 1, file=sys.stderr)
    dst = sys.argv[1] if len(sys.argv) > 1 else "interleave_layers__ssm_conv_h3__sliding_block__prompt.s"
    open(dst, "w").write(out)


if __name__ == "__main__":
    main()
```

```python
import sys, math, struct
from asmlib import Asm, kernel_header, kernel_desc
import gen as G
from gen import (MB, U_OFF, GU, WQ_OFF, WO_OFF, XBYTES, NEG, P_Q, P_K, P_V, P_SH, P_SK, P_SD, P_WQKV, P_WO, P_OUT,
                 P_DBG, P_WS, load_ptrs, srd, vr, ar, unpack, round2, CSA, CSB, BOFF, CHS, xlane_sum, xlane_max,
                 f32hex, CSCALE)

STAMPS = "stamps" in sys.argv
YP = 4224
YT_OFF = 4 * MB
QKV_OFF = [10 * MB, 24 * MB]
OF_OFF = [16 * MB, 30 * MB]
X2_OFF = 20 * MB
FL_OFF = 9 * MB
ST_OFF = 64 * MB
R0, R1, R2 = 0, 65536, 131072
ST_A, ST_B, TBL, CSX = 139264, 149504, 159744, 160256
MEGA_LDS = 163840
SC = "sc1"

nst = [0]


snames = {}


def stamp(a, name=""):
    if not STAMPS:
        return
    i = nst[0]
    nst[0] += 1
    if name:
        snames[i] = name
    a("s_memrealtime s[100:101]")
    a("s_waitcnt lgkmcnt(0)")
    a(f"v_writelane_b32 v1, s100, {i}")


def stamp_flush(a):
    if not STAMPS:
        return
    a("s_waitcnt vmcnt(0)")
    stamp(a)
    a("s_lshl_b32 s100, s2, 3")
    a("s_add_u32 s100, s100, s3")
    a("s_lshl_b32 s100, s100, 8")
    a(f"s_add_u32 s100, s100, {ST_OFF}")
    a("v_lshlrev_b32 v8, 2, v2")
    a(f"buffer_store_dword v1, v8, s[60:63], s100 offen")


def gen_k0():
    a = G.gen_k0()
    lines = a.lines
    assert lines[0].strip() == "s_cmp_ge_u32 s2, 448"
    b = Asm()
    b("s_cmp_ge_u32 s2, 454")
    b.branch("s_cbranch_scc1 k0_end")
    b("s_cmp_lt_u32 s2, 448")
    b.branch("s_cbranch_scc1 k0_main")
    b("s_load_dwordx2 s[4:5], s[0:1], 88")
    b("s_sub_u32 s3, s2, 448")
    b("s_lshl_b32 s3, s3, 15")
    b("v_lshlrev_b32 v1, 7, v0")
    b("v_mov_b32 v2, 0")
    b("s_waitcnt lgkmcnt(0)")
    b(f"s_add_u32 s8, s4, {FL_OFF}")
    b("s_addc_u32 s9, s5, 0")
    b(f"s_mov_b32 s10, {6*32768}")
    b("s_mov_b32 s11, 0x00020000")
    b("buffer_store_dword v2, v1, s[8:11], s3 offen")
    b("s_endpgm")
    b.label("k0_main")
    a.lines = b.lines + lines[2:]
    return a


def ln_params(a, s1, s2, r, nmr, t):
    a(f"v_mul_f32 v{s1}, s76, v{s1}")
    a(f"v_mul_f32 v{s2}, s76, v{s2}")
    a(f"v_fma_f32 v{s2}, -v{s1}, v{s1}, v{s2}")
    a(f"v_max_f32 v{s2}, 0, v{s2}")
    round2(a, s1, s2, t)
    a(f"v_add_f32 v{s2}, s77, v{s2}")
    round2(a, s1, s2, t)
    a(f"v_sqrt_f32 v{s2}, v{s2}")
    round2(a, s1, s2, t)
    a(f"v_rcp_f32 v{r}, v{s2}")
    a(f"v_mul_f32 v{nmr}, -v{s1}, v{r}")


uid = [0]


def signal(a, phase, sidx):
    uid[0] += 1
    a("s_waitcnt vmcnt(0)")
    a("s_barrier")
    a("s_cmp_lg_u32 s3, 0")
    a.branch(f"s_cbranch_scc1 m_sig{uid[0]}")
    a(f"s_lshl_b32 s10, s{sidx}, 7")
    a(f"s_add_u32 s10, s10, {FL_OFF + phase * 32768}")
    a("v_mov_b32 v8, 0")
    a("v_mov_b32 v9, 1")
    a("s_mov_b64 exec, 1")
    a(f"buffer_store_dword v9, v8, s[60:63], s10 offen {SC}")
    a("s_mov_b64 exec, -1")
    a.label(f"m_sig{uid[0]}")


def wait_flags(a, phase, base_code, n):
    uid[0] += 1
    u = uid[0]
    a("s_cmp_lg_u32 s3, 0")
    a.branch(f"s_cbranch_scc1 m_wd{u}")
    base_code()
    nl = (n + 63) // 64
    for j in range(nl):
        a(f"v_add_u32 v{8+j}, {64*j}, v2")
        a(f"v_min_u32 v{8+j}, {n-1}, v{8+j}")
        a(f"v_add_u32 v{8+j}, s10, v{8+j}")
        a(f"v_max_i32 v{8+j}, 0, v{8+j}")
        a(f"v_lshlrev_b32 v{8+j}, 7, v{8+j}")
    a(f"s_mov_b32 s10, {FL_OFF + phase * 32768}")
    a("s_mov_b32 s11, 0")
    a.label(f"m_wl{u}")
    for j in range(nl):
        a(f"buffer_load_dword v{12+j}, v{8+j}, s[60:63], s10 offen {SC}")
    a("s_waitcnt vmcnt(0)")
    for j in range(1, nl):
        a(f"v_and_b32 v12, v12, v{12+j}")
    a("v_cmp_ne_u32 vcc, 1, v12")
    a("s_add_u32 s11, s11, 1")
    a("s_cmp_gt_u32 s11, 400000")
    a.branch(f"s_cbranch_scc1 m_wd{u}")
    a.branch(f"s_cbranch_vccnz m_wl{u}")
    a.label(f"m_wd{u}")
    a("s_barrier")


ONES, S1, S2, R2R, NMR2, T, U, MISC = 72, 76, 80, 84, 86, 88, 124, 128
XF, XP = 16, 96
A_W, A_Y, A_CS = 0, 84, 112


def prefetch_xw(a):
    srd(a, 44, P_Q, size=XBYTES)
    for i in range(7):
        a(f"buffer_load_dwordx4 {ar(A_Y+4*i)}, v6, s[44:47], 0 offen offset:{64*i}")
    a("s_lshl_b32 s13, s5, 2")
    a("s_add_u32 s13, s13, s6")
    a("s_mul_i32 s14, s13, 43008")
    a("s_mul_i32 s15, s7, 7168")
    a("s_add_u32 s14, s14, s15")
    a(f"s_add_u32 s14, s14, {WQ_OFF}")
    a("s_add_u32 s15, s14, 14336")
    a("s_add_u32 s13, s14, 28672")
    a("v_add_u32 v7, 4096, v5")
    for i in range(7):
        off = 1024 * i
        for tile, sreg in enumerate((14, 15, 13)):
            if off < 4096:
                a(f"buffer_load_dwordx4 {ar(A_W+(i*3+tile)*4)}, v5, s[60:63], s{sreg} offen offset:{off}")
            else:
                a(f"buffer_load_dwordx4 {ar(A_W+(i*3+tile)*4)}, v7, s[60:63], s{sreg} offen offset:{off-4096}")


def phase1(a):
    a("s_lshr_b32 s10, s3, 2")
    a("s_lshl_b32 s11, s2, 1")
    a("s_add_u32 s11, s11, s10")
    a("s_lshl_b32 s12, s11, 12")
    srd(a, 40, P_SK, size=4096, soff=12)
    a("s_lshl_b32 s13, s2, 2")
    a(f"s_add_u32 s14, s{P_SD}, s13")
    a(f"s_addc_u32 s15, s{P_SD+1}, 0")
    a("s_load_dword s64, s[14:15], 0")
    a("v_and_b32 v8, 255, v0")
    a("v_lshlrev_b32 v8, 4, v8")
    a("v_subrev_u32 v10, 64, v8")
    a("v_subrev_u32 v11, 48, v8")
    a("buffer_load_dwordx4 v[16:19], v10, s[40:43], 0 offen")
    a("buffer_load_dwordx4 v[20:23], v11, s[40:43], 0 offen")
    a("v_add_u32 v12, 4096, v10")
    a("v_add_u32 v13, 4096, v11")
    a("buffer_load_dwordx4 v[24:27], v12, s[40:43], 0 offen")
    a("buffer_load_dwordx4 v[28:31], v13, s[40:43], 0 offen")
    a(f"s_mul_i32 s12, s11, {GU}")
    a("s_bfe_u32 s13, s3, 0x10001")
    a("s_mul_i32 s14, s13, 4160")
    a("s_add_u32 s12, s12, s14")
    a("s_lshl_b32 s15, s7, 11")
    a("s_add_u32 s12, s12, s15")
    a(f"s_add_u32 s12, s12, {U_OFF+64}")
    a(f"s_mul_i32 s65, s10, {CHS}")
    a(f"s_mul_i32 s66, s13, {CSB}")
    a("s_add_u32 s66, s66, s65")
    a(f"s_add_u32 s66, s66, {BOFF}")
    a("s_add_u32 s67, s66, s15")
    a("s_mov_b32 m0, s67")
    a("buffer_load_dwordx4 v5, s[60:63], s12 offen lds")
    a("buffer_load_dwordx4 v5, s[60:63], s12 offen offset:1024 lds")
    prefetch_xw(a)
    for i in range(4):
        a(f"v_mov_b32 v{44+i}, 0")
    a("v_add_u32 v9, s66, v5")
    a("v_cmp_gt_u32 vcc, 28, v2")
    a("s_and_saveexec_b64 s[68:69], vcc")
    a("ds_write_b128 v9, v[44:47] offset:4096")
    a("s_mov_b64 exec, s[68:69]")
    a("v_add_u32 v9, s65, v8")
    a(f"s_mul_i32 s65, s7, {CHS}")
    a("v_and_b32 v12, 3, v3")
    a(f"s_movk_i32 s66, {CSA}")
    a("v_mul_lo_u32 v12, v12, s66")
    a("v_lshrrev_b32 v13, 2, v3")
    a("v_add_u32 v13, v13, v4")
    a("v_lshl_add_u32 v12, v13, 4, v12")
    a("s_lshl_b32 s67, s6, 7")
    a("s_add_u32 s67, s67, s65")
    a("v_add_u32 v12, s67, v12")
    a("v_and_b32 v13, 1, v3")
    a(f"s_movk_i32 s66, {CSB}")
    a("v_mul_lo_u32 v13, v13, s66")
    a("v_lshrrev_b32 v14, 1, v3")
    a("v_lshlrev_b32 v14, 6, v14")
    a("v_sub_u32 v13, v13, v14")
    a("v_lshl_add_u32 v13, v4, 4, v13")
    a(f"s_add_u32 s67, s67, {BOFF+448}")
    a("v_add_u32 v13, s67, v13")

    def build_copies(D, extra_off):
        Tt = 32
        a(f"v_alignbit_b32 v{Tt+0}, v{D+3}, v{D+2}, 16")
        a(f"v_alignbit_b32 v{Tt+1}, v{D+4}, v{D+3}, 16")
        a(f"v_alignbit_b32 v{Tt+2}, v{D+5}, v{D+4}, 16")
        a(f"v_alignbit_b32 v{Tt+3}, v{D+6}, v{D+5}, 16")
        a(f"v_mov_b32 v{Tt+4}, v{Tt+1}")
        a(f"v_mov_b32 v{Tt+5}, v{Tt+2}")
        a(f"v_mov_b32 v{Tt+6}, v{Tt+3}")
        a(f"v_alignbit_b32 v{Tt+7}, v{D+7}, v{D+6}, 16")
        a(f"v_mov_b32 v{Tt+8}, v{D+3}")
        a(f"v_mov_b32 v{Tt+9}, v{D+4}")
        a(f"v_mov_b32 v{Tt+10}, v{D+5}")
        a(f"v_mov_b32 v{Tt+11}, v{D+6}")
        a(f"ds_write_b128 v9, {vr(Tt)} offset:{0*CSA+extra_off}")
        a(f"ds_write_b128 v9, {vr(Tt+8)} offset:{1*CSA+extra_off}")
        a(f"ds_write_b128 v9, {vr(Tt+4)} offset:{2*CSA+extra_off}")
        a(f"ds_write_b128 v9, {vr(D+4)} offset:{3*CSA+extra_off}")

    a("s_waitcnt vmcnt(32)")
    build_copies(16, 0)
    a("s_waitcnt vmcnt(30)")
    a("v_cmp_gt_u32 vcc, 48, v8")
    a("s_and_saveexec_b64 s[68:69], vcc")
    build_copies(24, 4096)
    a("s_mov_b64 exec, s[68:69]")
    a("s_waitcnt vmcnt(28) lgkmcnt(0)")
    a("s_barrier")
    stamp(a, "p1bar")
    ACC = 16
    FA = lambda i: vr(48 + 4 * i)
    FB = lambda i: vr(80 + 4 * i)
    a(f"ds_read_b128 {FA(0)}, v12")
    for i in range(8):
        a(f"ds_read_b128 {FB(i)}, v13 offset:{512*(7-i)}")
    for i in range(1, 8):
        a(f"ds_read_b128 {FA(i)}, v12 offset:{512*i}")
    for aa in range(8):
        for n in range(aa, 8):
            if aa == 0:
                a(f"s_waitcnt lgkmcnt({14-n})")
            elif n == aa:
                a(f"s_waitcnt lgkmcnt({min(15, 7-aa+2*aa)})")
            c = "0" if aa == 0 else vr(ACC + 4 * n)
            a(f"v_mfma_f32_16x16x32_bf16 {vr(ACC+4*n)}, {FA(aa)}, {FB(n-aa)}, {c}")
        a(f"ds_read_b128 {FA(aa)}, v12 offset:{64+512*aa}")
        a(f"ds_read_b128 {FB(7-aa)}, v13 offset:{64+512*aa}")
    for st in range(8):
        m = 7 - st
        a(f"s_waitcnt lgkmcnt({14-2*st})")
        for aa in range(0, 8 - m):
            n = aa + m
            a(f"v_mfma_f32_16x16x32_bf16 {vr(ACC+4*n)}, {FA(aa)}, {FB(m)}, {vr(ACC+4*n)}")
    stamp(a, "p1mfma")
    a("s_mul_i32 s66, s7, 6144")
    a(f"s_add_u32 s66, s66, {R1}")
    a("v_add_u32 v8, s66, v5")
    a("v_lshrrev_b32 v9, 1, v3")
    a("v_lshlrev_b32 v9, 5, v9")
    a("v_lshl_add_u32 v9, v4, 3, v9")
    a("v_and_b32 v10, 1, v3")
    a("v_lshl_add_u32 v9, v10, 2, v9")
    a("v_lshlrev_b32 v9, 1, v9")
    a(f"s_add_u32 s66, s65, {BOFF+CSB+4088-3584}")
    a("v_sub_u32 v10, s66, v9")
    a(f"s_mul_i32 s66, s7, {YP}")
    a("v_add_u32 v9, s66, v9")
    a(f"s_mul_i32 s67, s2, {2*YP}")
    a(f"s_add_u32 s67, s67, {YT_OFF}")
    a("s_lshl_b32 s68, s64, 16")
    a("s_and_b32 s69, s64, 0xffff0000")
    a("s_cmp_eq_u32 s7, 0")
    a("s_cselect_b32 s68, s68, s69")
    for rq in range(1, 4):
        a(f"s_cmp_eq_u32 s6, {rq}")
        a.branch(f"s_cbranch_scc1 m_p1r{rq}")
    for rq in range(4):
        if rq:
            a.label(f"m_p1r{rq}")
        for d in range(4):
            if d == rq:
                continue
            k = rq if rq < d else rq - 1
            for t in range(2):
                a(f"ds_write_b128 v8, {vr(ACC+4*(2*d+t))} offset:{d*12288+k*2048+t*1024}")
        for t in range(2):
            a(f"ds_read_b64 v[{72+2*t}:{73+2*t}], v10 offset:{512*(7-(2*rq+t))}")
        a("s_waitcnt lgkmcnt(0)")
        a("s_barrier")
        for t in range(2):
            for k in range(3):
                a(f"ds_read_b128 {vr(48+12*t+4*k)}, v8 offset:{rq*12288+k*2048+t*1024}")
        for t in range(2):
            keep = ACC + 4 * (2 * rq + t)
            unpack(a, 79, 78, 72 + 2 * t)
            unpack(a, 77, 76, 73 + 2 * t)
            for e in range(4):
                a(f"v_mul_f32 v{76+e}, s68, v{76+e}")
            round2(a, 76, 77, 80)
            round2(a, 78, 79, 80)
            a(f"s_waitcnt lgkmcnt({3-3*t})")
            for e in range(4):
                a(f"v_add_f32 v{keep+e}, v{keep+e}, v{48+12*t+e}")
                a(f"v_add_f32 v{52+12*t+e}, v{52+12*t+e}, v{56+12*t+e}")
            for e in range(4):
                a(f"v_add_f32 v{keep+e}, v{keep+e}, v{52+12*t+e}")
            round2(a, keep, keep + 1, 80)
            round2(a, keep + 2, keep + 3, 80)
            for e in range(4):
                a(f"v_add_f32 v{keep+e}, v{keep+e}, v{76+e}")
            a(f"v_cvt_pk_bf16_f32 v{82+2*t}, v{keep}, v{keep+1}")
            a(f"v_cvt_pk_bf16_f32 v{83+2*t}, v{keep+2}, v{keep+3}")
            a(f"buffer_store_dwordx2 v[{82+2*t}:{83+2*t}], v9, s[60:63], s67 offen offset:{512*(2*rq+t)} {SC}")
        if rq < 3:
            a.branch("s_branch m_p1j")
    a.label("m_p1j")
    stamp(a, "p1epi")
    signal(a, 0, 2)
    stamp(a, "p1sig")


def stats_mfma(a, frag, first):
    c1 = "0" if first else vr(S1)
    c2 = "0" if first else vr(S2)
    a(f"v_mfma_f32_16x16x32_bf16 {vr(S1)}, {vr(ONES)}, {frag}, {c1}")
    a(f"v_mfma_f32_16x16x32_bf16 {vr(S2)}, {frag}, {frag}, {c2}")


def stats_write(a, area):
    a(f"ds_write_b128 v14, {vr(S2)} offset:{area}")
    a(f"ds_write_b32 v15, v{S1} offset:{area}")


def stats_read(a, area, d):
    a(f"ds_read_b32 v{d}, v11 offset:{area}")
    a(f"ds_read_b32 v{d+1}, v12 offset:{area}")
    a(f"ds_read_b32 v{d+2}, v13 offset:{area}")


def stats_addrs(a):
    a("s_lshl_b32 s10, s3, 10")
    a(f"s_add_u32 s10, s10, {ST_A}")
    a("v_add_u32 v14, s10, v5")
    a("v_lshrrev_b32 v11, 2, v3")
    a("v_lshl_add_u32 v11, v11, 4, v3")
    a("v_lshlrev_b32 v11, 4, v11")
    a("v_and_b32 v12, 3, v3")
    a("v_lshl_add_u32 v11, v12, 2, v11")
    a("v_add_u32 v11, s10, v11")
    a("v_xor_b32 v12, 1024, v11")
    a("s_lshl_b32 s10, s3, 8")
    a(f"s_add_u32 s10, s10, {ST_A+8192}")
    a("v_lshl_add_u32 v15, v3, 2, s10")
    a("v_xor_b32 v13, 256, v15")


def astep(a, layer, i):
    O = XP + 4 * i
    for q in range(4):
        unpack(a, T + 2 * q, T + 2 * q + 1, O + q)
    for q in range(4):
        F = XF + 8 * i + 2 * q
        src = F if layer == 0 else T + 2 * q
        a(f"v_pk_fma_f32 v[{U+2*q}:{U+2*q+1}], v[{src}:{src+1}], v[{R2R}:{R2R+1}], v[{NMR2}:{NMR2+1}]")
    for q in range(4):
        F = XF + 8 * i + 2 * q
        m, c = (T + 2 * q, F) if layer == 0 else (F, T + 2 * q)
        a(f"v_pk_fma_f32 v[{U+2*q}:{U+2*q+1}], v[{U+2*q}:{U+2*q+1}], v[{m}:{m+1}], v[{c}:{c+1}]")
    for q in range(4):
        a(f"v_cvt_pk_bf16_f32 v{O+q}, v{U+2*q}, v{U+2*q+1}")
    a(f"ds_write_b128 v10, {vr(O)} offset:{1024*i}")
    stats_mfma(a, vr(O), i == 0)


def finish_stats1(a):
    stats_read(a, 0, MISC)
    a("s_waitcnt lgkmcnt(0)")
    a(f"v_add_f32 v{MISC}, v{MISC}, v{MISC+1}")
    a(f"v_add_f32 v{S1}, v{S1}, v{MISC+2}")
    ln_params(a, S1, MISC, R2R, NMR2, MISC + 1)
    a(f"v_mov_b32 v{R2R+1}, v{R2R}")
    a(f"v_mov_b32 v{NMR2+1}, v{NMR2}")


def hl_write_addr(a):
    a("s_mul_i32 s10, s6, 14336")
    a("s_mul_i32 s11, s7, 7168")
    a("s_add_u32 s10, s10, s11")
    a("v_add_u32 v10, s10, v5")


def gemm_part(a, layer):
    stats_write(a, ST_B - ST_A)
    a("s_mul_i32 s10, s7, 35840")
    a("v_add_u32 v8, s10, v5")
    a("s_mul_i32 s10, s7, -21504")
    a("s_add_u32 s10, s10, 28672")
    a("v_add_u32 v9, s10, v5")
    a("s_mul_i32 s10, s6, 14336")
    a("s_lshl_b32 s11, s5, 11")
    a("s_add_u32 s10, s10, s11")
    a("s_lshl_b32 s11, s7, 10")
    a("s_add_u32 s10, s10, s11")
    a("v_add_u32 v10, s10, v5")
    a("s_waitcnt lgkmcnt(0)")
    a("s_barrier")
    stamp(a, f"g{layer}main")
    ACC = 16
    FR = [64, 80]

    def rd(i, buf):
        for s in range(4):
            a(f"ds_read_b128 {vr(FR[buf]+4*s)}, v{8 if s < 2 else 9} offset:{(s&1)*14336+1024*i}")

    a("v_mov_b32 v100, v76")
    rd(0, 0)
    a(f"ds_read_b128 {vr(112)}, v10")
    stats_read(a, ST_B - ST_A, 96)
    if layer == 0:
        a("s_lshl_b32 s10, s5, 16")
        a("s_lshl_b32 s11, s3, 13")
        a("s_add_u32 s10, s10, s11")
        a(f"s_add_u32 s10, s10, {WO_OFF}")
        a(f"s_add_u32 s11, s11, {R1}")
        for h in range(2):
            a("s_mov_b32 m0, s11")
            for k in range(4):
                a(f"buffer_load_dwordx4 v5, s[60:63], s10 offen offset:{1024*k} lds")
            if h == 0:
                a("s_add_u32 s10, s10, 4096")
                a("s_add_u32 s11, s11, 4096")
    for i in range(7):
        buf = i & 1
        if i < 6:
            rd(i + 1, buf ^ 1)
            a("s_waitcnt lgkmcnt(4)")
        else:
            a("s_waitcnt lgkmcnt(0)")
        for s in range(4):
            for tile in range(3):
                d = vr(ACC + (s * 3 + tile) * 4)
                c = "0" if i == 0 else d
                w = ar(A_W + (i * 3 + tile) * 4)
                h = vr(FR[buf] + 4 * s)
                if tile < 2:
                    a(f"v_mfma_f32_16x16x32_bf16 {d}, {w}, {h}, {c}")
                else:
                    a(f"v_mfma_f32_16x16x32_bf16 {d}, {h}, {w}, {c}")
        if i == 0:
            a("v_add_f32 v96, v96, v97")
            a("v_add_f32 v100, v100, v98")
            ln_params(a, 100, 96, 101, 102, 97)
            a("s_lshl_b32 s10, s6, 6")
            a(f"s_add_u32 s10, s10, {TBL}")
            a("v_lshl_add_u32 v103, v3, 2, s10")
            a("ds_write_b32 v103, v101")
            a("ds_write_b32 v103, v102 offset:256")
            a("s_lshl_b32 s10, s3, 10")
            a(f"s_add_u32 s10, s10, {R2}")
            a("v_add_u32 v104, s10, v5")
            a(f"ds_write_b128 v104, {vr(112)}")
    stamp(a, f"g{layer}mfma")
    a("s_mul_i32 s10, s3, 6144")
    a("v_add_u32 v8, s10, v5")
    a("s_xor_b32 s11, s3, 1")
    a("s_mul_i32 s11, s11, 6144")
    a("v_add_u32 v9, s11, v5")
    a("s_barrier")
    for j in range(6):
        a(f"ds_write_b128 v8, {vr(ACC+24+4*j)} offset:{1024*j}")
    a("s_lshl_b32 s13, s5, 2")
    a("s_add_u32 s13, s13, s6")
    a("s_lshl_b32 s64, s13, 17")
    a("s_lshl_b32 s65, s4, 12")
    a("s_add_u32 s64, s64, s65")
    a("s_lshl_b32 s65, s7, 11")
    a("s_add_u32 s64, s64, s65")
    a(f"s_add_u32 s64, s64, {QKV_OFF[layer]}")
    a("s_lshl_b32 s65, s5, 1")
    a("s_lshr_b32 s66, s6, 1")
    a("s_add_u32 s65, s65, s66")
    a("s_lshl_b32 s65, s65, 6")
    a("s_lshl_b32 s66, s4, 1")
    a("s_add_u32 s65, s65, s66")
    a("s_add_u32 s65, s65, s7")
    a("s_lshl_b32 s65, s65, 1")
    a("s_and_b32 s66, s6, 1")
    a("s_add_u32 s65, s65, s66")
    a("s_lshl_b32 s65, s65, 10")
    a(f"s_add_u32 s65, s65, {QKV_OFF[layer]+4*MB}")
    a("s_lshl_b32 s66, s66, 4")
    a("s_sub_u32 s66, 28, s66")
    a("v_cmp_eq_u32 vcc, s66, v3")
    a("v_mov_b32 v12, s78")
    a("s_lshl_b32 s10, s7, 7")
    a(f"s_add_u32 s10, s10, {TBL}")
    a("v_lshl_add_u32 v10, v3, 2, s10")
    a("v_lshl_add_u32 v11, v4, 4, s10")
    for k in range(9):
        a(f"v_accvgpr_read_b32 v{112+k}, a{A_CS+k}")
    a("v_mov_b32 v121, v120")
    a("s_waitcnt lgkmcnt(0)")
    a("s_barrier")
    stamp(a, f"g{layer}red")
    for j in range(6):
        a(f"ds_read_b128 {vr(64+4*j)}, v9 offset:{1024*j}")
    for s in range(2):
        a(f"ds_read_b32 v{88+4*s}, v10 offset:{64*s}")
        a(f"ds_read_b32 v{90+4*s}, v10 offset:{64*s+256}")
        a(f"ds_read_b128 {vr(96+8*s)}, v11 offset:{64*s}")
        a(f"ds_read_b128 {vr(100+8*s)}, v11 offset:{64*s+256}")
    a("s_waitcnt lgkmcnt(0)")
    for s in range(2):
        A0 = ACC + 12 * s
        a(f"v_mov_b32 v{89+4*s}, v{88+4*s}")
        a(f"v_mov_b32 v{91+4*s}, v{90+4*s}")
        for k in range(12):
            a(f"v_add_f32 v{A0+k}, v{A0+k}, v{64+12*s+k}")
        for q in range(4):
            p = A0 + 2 * q
            a(f"v_pk_mul_f32 v[122:123], v[{112+2*q}:{113+2*q}], v[{90+4*s}:{91+4*s}]")
            a(f"v_pk_fma_f32 v[{p}:{p+1}], v[{p}:{p+1}], v[{88+4*s}:{89+4*s}], v[122:123]")
            a(f"v_cvt_pk_bf16_f32 v{64+4*s+q}, v{p}, v{p+1}")
        a(f"buffer_store_dwordx4 {vr(64+4*s)}, v5, s[60:63], s64 offen offset:{1024*s} {SC}")
        for q in range(2):
            p = A0 + 8 + 2 * q
            a(f"v_pk_mul_f32 v[122:123], v[120:121], v[{100+8*s+2*q}:{101+8*s+2*q}]")
            a(f"v_pk_fma_f32 v[{p}:{p+1}], v[{p}:{p+1}], v[{96+8*s+2*q}:{97+8*s+2*q}], v[122:123]")
            a(f"v_cvt_pk_bf16_f32 v{124+2*s+q}, v{p}, v{p+1}")
    for q in range(4):
        a(f"v_cndmask_b32 v{124+q}, v{124+q}, v12, vcc")
    a(f"buffer_store_dwordx4 {vr(124)}, v5, s[60:63], s65 offen {SC}")
    a("s_lshl_b32 s12, s4, 3")
    a("s_add_u32 s12, s12, s5")
    stamp(a, f"g{layer}epi")
    signal(a, 1 if layer == 0 else 4, 12)


def x_offset(a):
    a("s_lshl_b32 s10, s4, 6")
    a("s_lshl_b32 s11, s6, 4")
    a("s_add_u32 s10, s10, s11")
    a("v_add_u32 v6, s10, v3")
    a("s_movk_i32 s11, 896")
    a("v_mul_lo_u32 v6, v6, s11")
    a("s_mul_i32 s10, s7, 448")
    a("v_lshl_add_u32 v6, v4, 4, v6")
    a("v_add_u32 v6, s10, v6")


def phase2(a):
    for q in range(4):
        a(f"v_mov_b32 v{ONES+q}, s78")
    stats_addrs(a)
    a("s_waitcnt vmcnt(21)")
    for i in range(7):
        stats_mfma(a, ar(A_Y + 4 * i), i == 0)
    stats_write(a, 0)
    for i in range(7):
        for q in range(4):
            a(f"v_accvgpr_read_b32 v{T+q}, a{A_Y+4*i+q}")
        for q in range(4):
            unpack(a, XF + 8 * i + 2 * q, XF + 8 * i + 2 * q + 1, T + q)
    a("s_waitcnt lgkmcnt(0)")
    a("s_barrier")
    finish_stats1(a)
    stamp(a, "p2idle")
    wait_flags(a, 0, lambda: a("s_mov_b32 s10, 0"), 224)
    stamp(a, "p2flag")
    a("v_bfe_u32 v7, v2, 1, 2")
    a("v_bfe_u32 v8, v2, 4, 1")
    a("v_xor_b32 v7, v7, v8")
    a("v_and_b32 v8, 1, v2")
    a("v_lshl_add_u32 v7, v7, 1, v8")
    a("s_lshl_b32 s11, s7, 2")
    a("v_xor_b32 v7, s11, v7")
    a("v_lshlrev_b32 v7, 4, v7")
    a("v_xor_b32 v8, 64, v7")
    a("v_lshrrev_b32 v9, 3, v2")
    a(f"s_movk_i32 s11, {YP}")
    a("v_mul_lo_u32 v9, v9, s11")
    a("s_lshl_b32 s11, s4, 7")
    a("v_add3_u32 v7, v7, v9, s11")
    a("v_add3_u32 v8, v8, v9, s11")
    a("s_mul_i32 s12, s3, 7")
    a(f"s_mul_i32 s13, s12, {8*YP}")
    a(f"s_add_u32 s13, s13, {YT_OFF}")
    a("s_lshl_b32 s14, s12, 10")
    a(f"s_add_u32 s14, s14, {R1}")
    for j in range(7):
        a("s_mov_b32 m0, s14")
        a(f"buffer_load_dwordx4 v{7 if j % 2 == 0 else 8}, s[60:63], s13 offen {SC} lds")
        if j < 6:
            a(f"s_add_u32 s13, s13, {8*YP}")
            a("s_add_u32 s14, s14, 1024")
    stats_addrs(a)
    C = XP
    a("s_waitcnt vmcnt(7)")
    for i in range(7):
        for tile in range(3):
            d = vr(C + 4 * tile)
            c = "0" if i == 0 else d
            w = ar(A_W + (i * 3 + tile) * 4)
            if tile < 2:
                a(f"v_mfma_f32_16x16x32_bf16 {d}, {w}, {vr(ONES)}, {c}")
            else:
                a(f"v_mfma_f32_16x16x32_bf16 {d}, {vr(ONES)}, {w}, {c}")
    a("s_lshl_b32 s10, s3, 8")
    a(f"s_add_u32 s10, s10, {CSX}")
    a("v_lshl_add_u32 v7, v4, 4, s10")
    a("v_lshl_add_u32 v8, v3, 2, s10")
    a(f"ds_write_b128 v7, {vr(C)}")
    a(f"ds_write_b128 v7, {vr(C+4)} offset:64")
    a(f"ds_write_b32 v8, v{C+8} offset:128")
    a("v_xor_b32 v7, 256, v7")
    a("v_xor_b32 v8, 256, v8")
    a("v_bfe_u32 v10, v2, 2, 2")
    a("v_lshl_add_u32 v9, v4, 3, v10")
    a("v_lshlrev_b32 v9, 7, v9")
    a("v_lshrrev_b32 v10, 1, v10")
    a(f"v_and_b32 v{MISC}, 1, v4")
    a(f"v_lshl_or_b32 v10, v{MISC}, 1, v10")
    a("v_xor_b32 v10, s6, v10")
    a("v_lshl_add_u32 v9, v10, 5, v9")
    a("v_and_b32 v10, 3, v2")
    a("v_lshl_add_u32 v9, v10, 3, v9")
    a("s_mul_i32 s10, s7, 28672")
    a(f"s_add_u32 s10, s10, {R1}")
    a("v_add_u32 v9, s10, v9")
    hl_write_addr(a)
    a("s_waitcnt vmcnt(0) lgkmcnt(0)")
    a("s_barrier")
    stamp(a, "p2y")
    a(f"ds_read_b128 {vr(112)}, v7")
    a(f"ds_read_b128 {vr(116)}, v7 offset:64")
    a(f"ds_read_b32 v120, v8 offset:128")
    a("s_waitcnt lgkmcnt(0)")
    for k in range(9):
        a(f"v_add_f32 v{112+k}, v{112+k}, v{C+k}")
        a(f"v_accvgpr_write_b32 a{A_CS+k}, v{112+k}")
    for i in range(7):
        a(f"ds_read_b64_tr_b16 v[{XP+4*i}:{XP+4*i+1}], v9 offset:{4096*i}")
        a(f"ds_read_b64_tr_b16 v[{XP+4*i+2}:{XP+4*i+3}], v9 offset:{4096*i+512}")
    for i in range(7):
        a(f"s_waitcnt lgkmcnt({max(0, 12-2*i)})" if i == 0 else f"s_waitcnt lgkmcnt({12-2*i+1})")
        for q in range(4):
            a(f"v_accvgpr_write_b32 a{A_Y+4*i+q}, v{XP+4*i+q}")
        astep(a, 0, i)
    gemm_part(a, 0)


def phase5(a):
    for i in range(7):
        for q in range(4):
            a(f"v_accvgpr_read_b32 v{T+q}, a{A_Y+4*i+q}")
        for q in range(4):
            unpack(a, XF + 8 * i + 2 * q, XF + 8 * i + 2 * q + 1, T + q)
    for q in range(4):
        a(f"v_mov_b32 v{ONES+q}, s78")
    stamp(a, "p5pre")

    def base():
        a("s_lshl_b32 s10, s4, 3")
    wait_flags(a, 3, base, 7)
    stamp(a, "p5flag")
    a("s_lshl_b32 s10, s4, 2")
    a("s_add_u32 s10, s10, s6")
    a("s_mul_i32 s10, s10, 14336")
    a("s_mul_i32 s11, s7, 7168")
    a("s_add_u32 s10, s10, s11")
    a(f"s_add_u32 s10, s10, {X2_OFF}")
    a("s_add_u32 s11, s10, 4096")
    for i in range(7):
        a(f"buffer_load_dwordx4 {vr(XP+4*i)}, v5, s[60:63], s{10 if i < 4 else 11} offen offset:{1024*(i%4)} {SC}")
    stats_addrs(a)
    hl_write_addr(a)
    for i in range(7):
        a(f"s_waitcnt vmcnt({6-i})")
        stats_mfma(a, vr(XP + 4 * i), i == 0)
    stats_write(a, 0)
    a("s_waitcnt lgkmcnt(0)")
    a("s_barrier")
    stamp(a, "p5st")
    finish_stats1(a)
    for i in range(7):
        astep(a, 1, i)
    gemm_part(a, 1)


def phase3(a, layer):
    u = f"a{layer}"
    S, KV, QR, OA, M = 56, 16, 12, 8, 52
    a("s_cmp_eq_u32 s7, 1")
    a("s_cselect_b64 s[64:65], -1, 0")
    a(f"v_mov_b32 v{M}, {NEG}")
    a(f"v_lshlrev_b32 v{M+1}, 2, v4")
    for r in range(4):
        a(f"v_add_u32 v{M+2}, {r}, v{M+1}")
        a(f"v_cmp_gt_u32 vcc, v{M+2}, v3")
        a(f"v_cndmask_b32 v16, v{M}, 0, vcc")
        a(f"v_cndmask_b32 v17, 0, v{M}, vcc")
        a(f"v_cndmask_b32 v{S+r}, v16, v{M}, s[64:65]")
        a(f"v_cndmask_b32 v{S+4+r}, 0, v16, s[64:65]")
        a(f"v_cndmask_b32 v{S+64+r}, v17, 0, s[64:65]")
        a(f"v_cndmask_b32 v{S+68+r}, v{M}, v17, s[64:65]")
    a("s_lshl_b32 s12, s9, 17")
    srd(a, 40, P_WS, QKV_OFF[layer], size=131072, soff=12)
    srd(a, 44, P_WS, QKV_OFF[layer] + 2 * MB, size=131072, soff=12)
    srd(a, 48, P_WS, QKV_OFF[layer] + 4 * MB, size=131072, soff=12)
    a("s_lshl_b32 s64, s8, 3")
    a("s_mul_i32 s65, s3, 3")
    a("s_add_u32 s66, s64, s65")
    a("s_sub_u32 s66, s66, 16")
    a("s_lshl_b32 s66, s66, 10")
    a("v_add_u32 v18, s66, v5")
    a("v_add_u32 v19, 1024, v18")
    a("v_add_u32 v20, 2048, v18")
    a("s_add_u32 s67, s64, s3")
    a("s_lshl_b32 s68, s67, 10")
    a("s_and_b32 s69, s3, 6")
    a("s_lshl_b32 s12, s69, 10")
    a(f"v_add_u32 v{M+3}, s12, v5")
    stamp(a, f"a{layer}pre")

    def base():
        a("s_lshl_b32 s10, s8, 4")
        a("s_sub_u32 s10, s10, 32")
    wait_flags(a, 1 if layer == 0 else 4, base, 48)
    stamp(a, f"a{layer}flag")
    a(f"buffer_load_dwordx4 {vr(QR)}, v5, s[40:43], s68 offen {SC}")
    a("s_lshl_b32 s12, s65, 10")
    for j in range(3):
        a(f"s_add_u32 s13, s12, {1024*j}")
        a("s_mov_b32 m0, s13")
        a(f"buffer_load_dwordx4 v{18+j}, s[44:47], 0 offen {SC} lds")
    for j in range(3):
        a(f"s_add_u32 s13, s12, {24576+1024*j}")
        a("s_mov_b32 m0, s13")
        a(f"buffer_load_dwordx4 v{18+j}, s[48:51], 0 offen {SC} lds")
    a("s_waitcnt vmcnt(0)")
    a("s_barrier")
    stamp(a, f"a{layer}ld")
    RB = M + 3
    for b in range(2):
        for j in range(9):
            a(f"ds_read_b128 {vr(KV+4*j)}, v{RB} offset:{1024*(9*b+j)}")
        for j in range(9):
            jj = 9 * b + j
            a(f"s_waitcnt lgkmcnt({8-j})")
            c = vr(S + 4 * jj) if jj in (0, 1, 16, 17) else "0"
            a(f"v_mfma_f32_16x16x32_bf16 {vr(S+4*jj)}, {vr(KV+4*j)}, {vr(QR)}, {c}")
    for j in range(8):
        a(f"ds_read_b128 {vr(KV+4*j)}, v{RB} offset:{24576+1024*j}")
    stamp(a, f"a{layer}qk")
    a("s_cmp_ge_u32 s8, 2")
    a.branch(f"s_cbranch_scc1 m_ne{u}")
    a("s_sub_u32 s12, 16, s64")
    a("s_sub_u32 s12, s12, s69")
    for j in range(16):
        a(f"s_cmp_gt_i32 s12, {j}")
        a(f"s_cselect_b32 s13, {NEG}, 0")
        for r in range(4):
            a(f"v_add_f32 v{S+4*j+r}, s13, v{S+4*j+r}")
    a.label(f"m_ne{u}")
    a(f"v_max3_f32 v{M}, v{S}, v{S+1}, v{S+2}")
    a(f"v_max3_f32 v{M+1}, v{S+3}, v{S+4}, v{S+5}")
    for k in range(6, 72, 4):
        a(f"v_max3_f32 v{M}, v{M}, v{S+k}, v{S+k+1}")
        if k + 3 < 72:
            a(f"v_max3_f32 v{M+1}, v{M+1}, v{S+k+2}, v{S+k+3}")
    a(f"v_max_f32 v{M}, v{M}, v{M+1}")
    xlane_max(a, M, M + 1)
    a(f"v_mul_f32 v{M}, -v{M}, s79")
    a(f"v_mov_b32 v{M+1}, v{M}")
    a(f"v_mov_b32 v48, s79")
    a(f"v_mov_b32 v49, s79")
    for G_ in range(9):
        b = S + 8 * G_
        for k in range(0, 8, 2):
            a(f"v_pk_fma_f32 v[{b+k}:{b+k+1}], v[{b+k}:{b+k+1}], v[48:49], v[{M}:{M+1}]")
        for k in range(8):
            a(f"v_exp_f32 v{b+k}, v{b+k}")
        for q in range(4):
            a(f"v_cvt_pk_bf16_f32 v{b+q}, v{b+2*q}, v{b+2*q+1}")
        slot = G_ % 4
        if G_ in (0, 4, 8):
            a("s_waitcnt lgkmcnt(0)")
        for dt in range(2):
            c = "0" if G_ == 0 else vr(OA + 4 * dt)
            a(f"v_mfma_f32_16x16x32_bf16 {vr(OA+4*dt)}, {vr(KV+8*slot+4*dt)}, {vr(b)}, {c}")
        if G_ + 4 < 9:
            for dt in range(2):
                a(f"ds_read_b128 {vr(KV+8*slot+4*dt)}, v{RB} offset:{24576+1024*(2*(G_+4)+dt)}")
    a("v_cmp_eq_u32 vcc, 3, v4")
    a(f"v_cndmask_b32 v{M}, 0, v{OA+4}, vcc")
    xlane_sum(a, M, M + 1)
    a(f"v_rcp_f32 v{M}, v{M}")
    for k in range(8):
        a(f"v_mul_f32 v{OA+k}, v{OA+k}, v{M}")
    for q in range(4):
        a(f"v_cvt_pk_bf16_f32 v{16+q}, v{OA+2*q}, v{OA+2*q+1}")
    a("s_lshl_b32 s12, s67, 4")
    a("s_add_u32 s12, s12, s9")
    a("s_lshl_b32 s12, s12, 10")
    a(f"s_add_u32 s12, s12, {OF_OFF[layer]}")
    a(f"buffer_store_dwordx4 {vr(16)}, v5, s[60:63], s12 offen {SC}")
    a("s_lshl_b32 s12, s8, 4")
    a("s_add_u32 s12, s12, s9")
    stamp(a, f"a{layer}epi")
    signal(a, 2 if layer == 0 else 5, 12)


def phase4(a, layer):
    u = f"o{layer}"
    a("s_cmp_eq_u32 s5, 7")
    a.branch(f"s_cbranch_scc1 m_skip{u}")
    a("s_bfe_u32 s64, s3, 0x10001")
    a("s_lshr_b32 s65, s3, 2")
    a("s_lshl_b32 s66, s65, 1")
    a("s_add_u32 s66, s66, s7")
    a("s_xor_b32 s67, s66, 1")
    a("s_lshl_b32 s10, s7, 13")
    a("s_lshl_b32 s11, s66, 14")
    a("s_add_u32 s11, s11, s10")
    a("v_add_u32 v16, s11, v5")
    a("s_lshl_b32 s11, s67, 14")
    a("s_add_u32 s11, s11, s10")
    a("v_add_u32 v17, s11, v5")
    a("s_lshl_b32 s11, s64, 15")
    a("s_add_u32 s11, s11, s10")
    a(f"s_add_u32 s11, s11, {R1}")
    a("v_add_u32 v18, s11, v5")
    a("s_lshl_b32 s10, s4, 6")
    a("s_lshl_b32 s11, s66, 4")
    a("s_add_u32 s10, s10, s11")
    a("v_add_u32 v19, s10, v3")
    a("s_movk_i32 s11, 896")
    a("v_mul_lo_u32 v19, v19, s11")
    a("s_lshl_b32 s10, s5, 7")
    a("s_lshl_b32 s11, s64, 6")
    a("s_add_u32 s10, s10, s11")
    a("v_lshl_add_u32 v19, v4, 4, v19")
    a("v_add_u32 v19, s10, v19")
    a("s_lshl_b32 s10, s66, 1")
    a("s_add_u32 s10, s10, s64")
    a("s_lshl_b32 s10, s10, 10")
    a(f"s_add_u32 s10, s10, {R2}")
    a("v_add_u32 v20, s10, v5")
    a(f"ds_read_b128 {vr(24)}, v20")
    a("s_lshl_b32 s10, s3, 11")
    a(f"s_add_u32 s10, s10, {ST_A}")
    a("v_add_u32 v21, s10, v5")
    a("v_xor_b32 v22, 2048, v21")
    if layer == 1:
        srd(a, 40, P_OUT, size=XBYTES)
    stamp(a, f"o{layer}pre")

    def base():
        a("s_lshr_b32 s10, s4, 1")
        a("s_lshl_b32 s10, s10, 4")
    wait_flags(a, 2 if layer == 0 else 5, base, 16)
    stamp(a, f"o{layer}flag")
    a("s_lshl_b32 s10, s4, 16")
    a("s_lshl_b32 s11, s3, 13")
    a("s_add_u32 s10, s10, s11")
    a(f"s_add_u32 s10, s10, {OF_OFF[layer]}")
    for h in range(2):
        a("s_mov_b32 m0, s11")
        for k in range(4):
            a(f"buffer_load_dwordx4 v5, s[60:63], s10 offen offset:{1024*k} {SC} lds")
        if h == 0:
            a("s_add_u32 s10, s10, 4096")
            a("s_add_u32 s11, s11, 4096")
    ACC, FR = 28, 44
    for k in range(8):
        for b in range(2):
            a(f"ds_read_b128 {vr(FR+8*k+4*b)}, v18 offset:{16384*b+1024*k}")
    a("s_waitcnt vmcnt(0)")
    a("s_barrier")
    stamp(a, f"o{layer}ld")
    OB = 108
    for k in range(3):
        for x in range(2):
            a(f"ds_read_b128 {vr(OB+8*k+4*x)}, v{16+x} offset:{1024*k}")
    for k in range(8):
        rem = min(7 - k, 2) * 2
        a(f"s_waitcnt lgkmcnt({rem})")
        sl = k % 3
        for x in range(2):
            for b in range(2):
                d = vr(ACC + 8 * x + 4 * b)
                cc = "0" if k == 0 else d
                a(f"v_mfma_f32_16x16x32_bf16 {d}, {vr(FR+8*k+4*b)}, {vr(OB+8*sl+4*x)}, {cc}")
        if k + 3 < 8:
            for x in range(2):
                a(f"ds_read_b128 {vr(OB+8*sl+4*x)}, v{16+x} offset:{1024*(k+3)}")
    for b in range(2):
        a(f"ds_write_b128 v21, {vr(ACC+8+4*b)} offset:{1024*b}")
    a("s_waitcnt lgkmcnt(0)")
    a("s_barrier")
    for b in range(2):
        a(f"ds_read_b128 {vr(44+4*b)}, v22 offset:{1024*b}")
    a("s_waitcnt lgkmcnt(0)")
    for k in range(8):
        a(f"v_add_f32 v{ACC+k}, v{ACC+k}, v{44+k}")
    for q in range(4):
        lo, hi = ACC + 2 * q, ACC + 2 * q + 1
        round2(a, lo, hi, 52)
        unpack(a, 53, 54, 24 + q)
        a(f"v_add_f32 v{lo}, v{lo}, v53")
        a(f"v_add_f32 v{hi}, v{hi}, v54")
        a(f"v_cvt_pk_bf16_f32 v{56+q}, v{lo}, v{hi}")
    if layer == 0:
        a("s_lshl_b32 s10, s4, 2")
        a("s_add_u32 s10, s10, s66")
        a("s_mul_i32 s10, s10, 14")
        a("s_lshl_b32 s11, s5, 1")
        a("s_add_u32 s10, s10, s11")
        a("s_add_u32 s10, s10, s64")
        a("s_lshl_b32 s10, s10, 10")
        a(f"s_add_u32 s10, s10, {X2_OFF}")
        a(f"buffer_store_dwordx4 {vr(56)}, v5, s[60:63], s10 offen {SC}")
        a("s_lshl_b32 s12, s4, 3")
        a("s_add_u32 s12, s12, s5")
        signal(a, 3, 12)
    else:
        a(f"buffer_store_dwordx4 {vr(56)}, v19, s[40:43], 0 offen")
    if STAMPS:
        a.branch(f"s_branch m_skip2{u}")
        a.label(f"m_skip{u}")
        n0 = nst[0]
        nst[0] -= 3
        stamp(a); stamp(a); stamp(a)
        a.label(f"m_skip2{u}")
    else:
        a.label(f"m_skip{u}")


def gen_mega():
    a = Asm()
    a("s_cmp_ge_u32 s2, 256")
    a.branch("s_cbranch_scc1 m_end")
    a("v_lshrrev_b32 v1, 6, v0")
    a("v_and_b32 v2, 63, v0")
    a("v_readfirstlane_b32 s3, v1")
    stamp(a)
    load_ptrs(a)
    a("v_and_b32 v3, 15, v2")
    a("v_lshrrev_b32 v4, 4, v2")
    a("v_lshlrev_b32 v5, 4, v2")
    a("s_and_b32 s10, s2, 7")
    a("s_lshr_b32 s11, s2, 3")
    a("s_lshl_b32 s4, s10, 2")
    a("s_lshr_b32 s12, s11, 3")
    a("s_add_u32 s4, s4, s12")
    a("s_and_b32 s5, s11, 7")
    a("s_lshr_b32 s8, s4, 1")
    a("s_and_b32 s9, s11, 15")
    a("s_lshr_b32 s6, s3, 1")
    a("s_and_b32 s7, s3, 1")
    a("s_mov_b32 s76, 0x3b124925")
    a("s_mov_b32 s77, 0x3727c5ac")
    a("s_mov_b32 s78, 0x3f803f80")
    a(f"s_mov_b32 s79, {f32hex(CSCALE)}")
    x_offset(a)
    a("s_waitcnt lgkmcnt(0)")
    srd(a, 60, P_WS, size=0x10000000)
    a("s_cmp_ge_u32 s2, 224")
    a.branch("s_cbranch_scc1 m_nop1")
    phase1(a)
    a.branch("s_branch m_nop1b")
    a.label("m_nop1")
    prefetch_xw(a)
    if STAMPS:
        nst[0] -= 4
        stamp(a); stamp(a); stamp(a); stamp(a)
    a.label("m_nop1b")
    phase2(a)
    phase3(a, 0)
    phase4(a, 0)
    phase5(a)
    phase3(a, 1)
    phase4(a, 1)
    stamp_flush(a)
    a.label("m_end")
    a("s_endpgm")
    return a


def main():
    hdr = open("interleave_layers__ssm_conv_h3__sliding_block__prompt.s.ref").read().split("\n")
    hdr = [l for l in hdr if l.startswith(";") and "@launch" not in l and "Override launch" not in l and "grid=ceil" not in l]
    kernels = [
        ("k0_kernel", gen_k0(), 454, 256, 0),
        ("mega_kernel", gen_mega(), 256, 512, MEGA_LDS),
    ]
    out = "\n".join(hdr) + "\n"
    for n, _, g, b, l in kernels:
        out += f"; @launch kernel={n} grid=({g},1,1) block=({b},1,1) lds={l}\n"
    out += '.amdgcn_target "amdgcn-amd-amdhsa--gfx950"\n.text\n'
    for n, a, *_ in kernels:
        out += kernel_header(n) + a.text()
    out += '.section .rodata,"a"\n'
    for n, a, *_ in kernels:
        out += kernel_desc(n, a.maxv + 1, a.maxa + 1, a.maxs + 1)
        print(n, "vgpr", a.maxv + 1, "agpr", a.maxa + 1, "sgpr", a.maxs + 1, "stamps", nst[0], file=sys.stderr)
    dst = sys.argv[1] if len(sys.argv) > 1 and sys.argv[1] != "stamps" else "interleave_layers__ssm_conv_h3__sliding_block__prompt.s"
    open(dst, "w").write(out)
    if STAMPS:
        open(dst + ".names", "w").write(",".join(snames.get(i, "") for i in range(nst[0])))


if __name__ == "__main__":
    main()
```

```python
import sys
sys.argv = ["gen2.py", "/dev/null", "stamps"]
import gen2 as g
from gen2 import *
def gen(mode):
    g.nst[0] = 0
    a = Asm()
    a("s_cmp_ge_u32 s2, 256"); a.branch("s_cbranch_scc1 m_end")
    a("v_lshrrev_b32 v1, 6, v0"); a("v_and_b32 v2, 63, v0"); a("v_readfirstlane_b32 s3, v1")
    stamp(a)
    load_ptrs(a)
    a("v_and_b32 v3, 15, v2"); a("v_lshrrev_b32 v4, 4, v2"); a("v_lshlrev_b32 v5, 4, v2")
    a("s_and_b32 s10, s2, 7"); a("s_lshr_b32 s11, s2, 3"); a("s_lshl_b32 s4, s10, 2"); a("s_lshr_b32 s12, s11, 3")
    a("s_add_u32 s4, s4, s12"); a("s_and_b32 s5, s11, 7"); a("s_lshr_b32 s6, s3, 1"); a("s_and_b32 s7, s3, 1")
    x_offset(a)
    a("s_waitcnt lgkmcnt(0)")
    srd(a, 60, P_WS, size=0x10000000)
    stamp(a)
    b = Asm(); prefetch_xw(b)
    for ln in b.lines:
        t = ln.strip()
        if t.startswith("buffer_load"):
            isx = "s[44:47]" in t
            if (isx and "x" not in mode) or (not isx and "w" not in mode): continue
            if "v" in mode: t = t.replace("a[", "v[").replace("v[8", "v[8")
        a(t)
    stamp(a)
    a("s_waitcnt vmcnt(0)")
    stamp_flush(a)
    a.label("m_end"); a("s_endpgm")
    out = "; @launch kernel=k0_kernel grid=(454,1,1) block=(256,1,1) lds=0\n; @launch kernel=mega_kernel grid=(256,1,1) block=(512,1,1) lds=163840\n"
    out += '.amdgcn_target "amdgcn-amd-amdhsa--gfx950"\n.text\n'
    k0 = gen_k0()
    out += kernel_header("k0_kernel") + k0.text() + kernel_header("mega_kernel") + a.text()
    out += '.section .rodata,"a"\n' + kernel_desc("k0_kernel", 124, 0, 64) + kernel_desc("mega_kernel", 132, 121, 102)
    return out
for m in ["xw", "x", "w"]:
    open(f"mb5_{m}.s", "w").write(gen(m))
    open(f"mb5_{m}.s.names", "w").write("start,karg,issued,done")
```
